```python
import torch

def _softmax(x, axis=-1):
    return torch.softmax(x, dim=axis)
def _gelu(x):
    return torch.nn.functional.gelu(x, approximate="tanh")
def _silu(x):
    return torch.nn.functional.silu(x)
def _sigmoid(x):
    return torch.sigmoid(x)
def _layernorm(x, axis=-1, eps=1e-5):
    m = x.mean(dim=axis, keepdim=True)
    v = x.var(dim=axis, keepdim=True, unbiased=False)
    return (x - m) / torch.sqrt(v + eps)
def _scatter_add(tgt, idx, src, axis=0):
    return tgt.clone().index_add_(axis, idx, src)
def _segment_sum(src, seg, n):
    out = torch.zeros((n,) + src.shape[1:], dtype=src.dtype)
    return out.index_add_(0, seg, src)
def _pad(x, pw):
    flat = tuple(v for pair in reversed(pw) for v in pair)
    return torch.nn.functional.pad(x, flat)

kernel_name = 'standalone__paged_block_table_kv_radixattention__sampling'

def setup_inputs():

    _w = (lambda a: (lambda t: t.to(torch.bfloat16) if t.is_floating_point() else t)(torch.as_tensor(a)))
    B, H, Hkv, Dh = 8, 32, 8, 128
    Lk = 4096
    bs = 16
    nb = max(2, Lk // bs)
    P = max(1, nb // 2)
    n_phys = P + B * (nb - P)
    shared = torch.arange(P, dtype=torch.int64)
    priv = P + torch.arange(B * (nb - P), dtype=torch.int64).reshape(B, nb - P)
    bt = torch.cat([torch.tile(shared[None, :], (B, 1)), priv], dim=1)
    ctx = nb * bs - (torch.arange(1, B + 1, dtype=torch.int64) * 2654435761) % max(1, (nb * bs - P * bs) // 2)
    return {
        "q": _w((lambda *s: torch.randn(*s, dtype=torch.bfloat16) * 0.8)(B, H, Dh)),
        "k_cache": _w((lambda *s: torch.randn(*s, dtype=torch.bfloat16) * 0.8)(n_phys, bs, Hkv, Dh)),
        "v_cache": _w((lambda *s: torch.randn(*s, dtype=torch.bfloat16) * 0.05)(n_phys, bs, Hkv, Dh)),
        "block_table": _w(bt.to(torch.int64)),
        "ctx_lens": _w(torch.as_tensor(ctx).to(torch.int64)),
    }

def reference(q, k_cache, v_cache, block_table, ctx_lens):
    B, H, Dh = q.shape
    n_phys, bs, Hkv, _ = k_cache.shape
    nb = block_table.shape[1]
    Lk = nb * bs
    rep = H // Hkv
    k = k_cache[block_table].reshape(B, Lk, Hkv, Dh)
    v = v_cache[block_table].reshape(B, Lk, Hkv, Dh)
    k = (lambda x, n, axis: torch.repeat_interleave(x, n, dim=axis))(k, rep, axis=2)
    v = (lambda x, n, axis: torch.repeat_interleave(x, n, dim=axis))(v, rep, axis=2)
    scores = torch.einsum("bhd,bkhd->bhk", q, k) * (Dh ** -0.5)
    pos = torch.arange(Lk)
    valid = pos[None, :] < ctx_lens[:, None]
    scores = torch.where(valid[:, None, :], scores, -1e9)
    p = _softmax(scores, axis=-1)
    return torch.einsum("bhk,bkhd->bhd", p, v)
```

```python
import sys

NAME = "standalone__paged_block_table_kv_radixattention__sampling"

HEADER = """; Kernarg layout for this problem (64 bytes, ptrs only, base s[0:1]):
"""

NPHYS = 1152
KV_BYTES = NPHYS * 32768
WS_H = 0
WS_M = 4096
WS_L = WS_M + (64 << 10)
WS_O = 1 << 20
WS_SIZE = WS_O + (8 << 20)
SCALE_LOG2 = 0.08838834764831845 * 1.4426950408889634


def f32hex(x):
    import struct
    return "0x%08x" % struct.unpack("<I", struct.pack("<f", x))[0]


class A:
    def __init__(self):
        self.l = []

    def __call__(self, s):
        self.l.append("    " + s)

    def lab(self, s):
        self.l.append(s + ":")

    def c(self, s):
        self.l.append("    ; " + s)

    def text(self):
        return "\n".join(self.l) + "\n"


def vr(a, n=1):
    return "v%d" % a if n == 1 else "v[%d:%d]" % (a, a + n - 1)


def sr(a, n=1):
    return "s%d" % a if n == 1 else "s[%d:%d]" % (a, a + n - 1)


def kernel_a(a):
    sQ, sK, sV, sBT, sCTX, sOUT, sDBG, sWS = 4, 6, 8, 10, 12, 14, 16, 18
    SRDK, SRDV, SRDW = 20, 24, 28
    sC = 32
    sB = 40
    sD = 49
    sG, sI, sW, sS, sSH, sNR, sR = 57, 58, 59, 60, 61, 62, 63
    sSOFF = 64
    sJ16 = 72
    sMK = 80
    sT0, sT1, sT2, sT3 = 96, 97, 98, 99
    sWB = 100
    sCH = 101
    sU = sB + 8
    vLANE = 1
    vVOFF = 2
    vKA = 6
    vVA = 14
    vPW, vPR = 18, 19
    vCTXH = 20
    vCTXR = 21
    vLIM = 22
    vMAX = 30
    vNINF = 31
    vQ = 32
    vS = 64
    vKF = 128
    vT = 160
    vVF = 160
    vTMP = 192
    vONE = 208
    vOOFF = 212
    vX, vOFF, vTT, vM32, vJ, vID = 213, 214, 215, 216, 217, 218
    vNMC = 219
    vACO = 224
    vACL = 240

    a.lab("attn_part_kernel")
    a("s_cmp_ge_u32 s2, 256")
    a("s_cbranch_scc1 A_end")
    a("s_load_dwordx16 s[4:19], s[0:1], 0")
    a("v_and_b32 v1, 63, v0")
    a("v_lshrrev_b32 v2, 6, v0")
    a("s_and_b32 s%d, s2, 7" % sG)
    a("s_lshr_b32 s%d, s2, 3" % sI)
    a("v_readfirstlane_b32 s%d, v2" % sW)
    t0, t1, t2, t3 = vTMP, vTMP + 1, vTMP + 2, vTMP + 3
    a.c("DMA voffsets")
    a("v_lshrrev_b32 %s, 4, v1" % vr(t0))
    a("v_and_b32 %s, 15, v1" % vr(t1))
    a("s_lshl_b32 s%d, s%d, 8" % (sT0, sG))
    for p in range(4):
        a("v_lshl_or_b32 %s, %s, 2, %d" % (vr(t2), vr(t0), p))
        a("v_xor_b32 %s, %s, %s" % (vr(t2), vr(t2), vr(t1)))
        a("v_lshlrev_b32 %s, 4, %s" % (vr(t2), vr(t2)))
        a("v_lshl_add_u32 %s, %s, 11, %s" % (vr(t2), vr(t0), vr(t2)))
        a("v_add_u32 %s, %d, %s" % (vr(t2), p * 8192 - 1024 * p, vr(t2)))
        a("v_add_u32 %s, s%d, %s" % (vr(vVOFF + p), sT0, vr(t2)))
    a("s_lshl_b32 s%d, s%d, 15" % (sWB, sW))
    a.c("K fragment read addresses")
    a("v_and_b32 %s, 31, v1" % vr(t0))
    a("v_lshrrev_b32 %s, 5, v1" % vr(t1))
    a("v_and_b32 %s, 3, v1" % vr(t2))
    a("v_bfe_u32 %s, v1, 2, 2" % vr(t3))
    a("v_lshl_or_b32 %s, %s, 2, %s" % (vr(t2), vr(t2), vr(t3)))
    a("v_xor_b32 %s, %s, %s" % (vr(t2), vr(t2), vr(t1)))
    a("v_lshlrev_b32 %s, 4, %s" % (vr(t2), vr(t2)))
    a("v_lshl_add_u32 %s, %s, 8, %s" % (vr(t2), vr(t0), vr(t2)))
    a("v_add_u32 %s, s%d, %s" % (vr(vKA), sWB, vr(t2)))
    for s in range(1, 8):
        a("v_xor_b32 %s, %d, %s" % (vr(vKA + s), s << 5, vr(vKA)))
    a.c("V fragment read addresses")
    t4, t5 = vTMP + 4, vTMP + 5
    a("v_bfe_u32 %s, v1, 2, 2" % vr(t0))
    a("v_lshrrev_b32 %s, 5, v1" % vr(t1))
    a("v_bfe_u32 %s, v1, 4, 1" % vr(t2))
    a("v_bfe_u32 %s, v1, 1, 1" % vr(t3))
    a("v_lshl_or_b32 %s, %s, 1, %s" % (vr(t2), vr(t2), vr(t3)))
    a("s_lshl_b32 s%d, s%d, 2" % (sT1, sW))
    a("v_or_b32 %s, s%d, %s" % (vr(t2), sT1, vr(t2)))
    for u in range(2):
        a("v_lshl_or_b32 %s, %s, 2, %s" % (vr(t3), vr(t0), vr(t1)))
        if u:
            a("v_or_b32 %s, 2, %s" % (vr(t3), vr(t3)))
        a("v_xor_b32 %s, %s, %s" % (vr(t3), vr(t3), vr(t2)))
        a("v_lshlrev_b32 %s, 4, %s" % (vr(t3), vr(t3)))
        a("v_lshl_add_u32 %s, %s, 2, %s" % (vr(t4), vr(t1), vr(t0)))
        a("v_add_u32 %s, %d, %s" % (vr(t4), 8 * u, vr(t4)))
        a("v_lshl_add_u32 %s, %s, 8, %s" % (vr(t3), vr(t4), vr(t3)))
        a("v_and_b32 %s, 1, v1" % vr(t5))
        a("v_lshl_add_u32 %s, %s, 3, %s" % (vr(vVA + u), vr(t5), vr(t3)))
        a("v_add_u32 %s, 0x10000, %s" % (vr(vVA + 2 + u), vr(vVA + u)))
    a.c("P addresses")
    a("v_lshlrev_b32 %s, 4, v1" % vr(t0))
    a("v_add_u32 %s, 0x20000, %s" % (vr(vPR), vr(t0)))
    a("s_lshl_b32 s%d, s%d, 13" % (sT1, sW))
    a("v_add_u32 %s, s%d, %s" % (vr(vPW), sT1, vr(vPR)))
    a("v_mov_b32 %s, 0xff800000" % vr(vNINF))
    for k in range(4):
        a("v_mov_b32 %s, 0x3f803f80" % vr(vONE + k))
    a("v_and_b32 %s, 31, v1" % vr(t0))
    a("v_lshrrev_b32 %s, 5, v1" % vr(t1))
    a("v_lshlrev_b32 %s, 4, %s" % (vr(t0), vr(t0)))
    a("v_lshl_add_u32 %s, %s, 11, %s" % (vr(t0), vr(t1), vr(t0)))
    a("s_lshl_b32 s%d, s%d, 9" % (sT1, sW))
    a("v_add_u32 %s, s%d, %s" % (vr(vOOFF), sT1, vr(t0)))
    vTO, vTO2, vQO, vCO = vTMP + 8, vTMP + 9, vTMP + 10, vTMP + 11
    a("v_lshlrev_b32 %s, 4, v1" % vr(vTO))
    a("v_add_u32 %s, 0x1000, %s" % (vr(vTO2), vr(vTO)))
    a("v_bfe_u32 %s, v1, 2, 3" % vr(t0))
    a("v_lshlrev_b32 %s, 2, %s" % (vr(vCO), vr(t0)))
    a("v_lshlrev_b32 %s, 13, %s" % (vr(vQO), vr(t0)))
    a("v_and_b32 %s, 3, v1" % vr(t1))
    a("v_lshl_add_u32 %s, %s, 8, %s" % (vr(vQO), vr(t1), vr(vQO)))
    a("v_lshrrev_b32 %s, 5, v1" % vr(t1))
    a("v_lshl_add_u32 %s, %s, 4, %s" % (vr(vQO), vr(t1), vr(vQO)))
    a("s_lshl_b32 s%d, s%d, 10" % (sT1, sG))
    a("v_add_u32 %s, s%d, %s" % (vr(vQO), sT1, vr(vQO)))
    a("s_waitcnt lgkmcnt(0)")
    a("s_load_dwordx8 s[%d:%d], s[%d:%d], 0" % (sC, sC + 7, sCTX, sCTX + 1))
    for b in range(8):
        a("global_load_dwordx4 %s, %s, s[%d:%d] offset:%d" % (
            vr(vT + 4 * b, 4), vr(vTO if b < 4 else vTO2), sBT, sBT + 1, (b & 3) * 1024))
    a("global_load_dword %s, %s, s[%d:%d]" % (vr(vCTXR), vr(vCO), sCTX, sCTX + 1))
    for s in range(8):
        a("global_load_dwordx4 %s, %s, s[%d:%d] offset:%d" % (vr(vQ + 4 * s, 4), vr(vQO), sQ, sQ + 1, s * 32))
    for srd, p, n in ((SRDK, sK, KV_BYTES), (SRDV, sV, KV_BYTES), (SRDW, sWS, WS_SIZE)):
        a("s_mov_b32 s%d, s%d" % (srd, p))
        a("s_and_b32 s%d, s%d, 0xffff" % (srd + 1, p + 1))
        a("s_mov_b32 s%d, 0x%x" % (srd + 2, n))
        a("s_mov_b32 s%d, 0x20000" % (srd + 3))
    a("s_waitcnt lgkmcnt(0)")
    a.c("nblk per batch")
    for b in range(8):
        a("s_cmp_lt_i32 s%d, 1" % (sC + b))
        a("s_cselect_b32 s%d, 0x1000, s%d" % (sC + b, sC + b))
        a("s_min_i32 s%d, s%d, 0x1000" % (sC + b, sC + b))
        a("s_add_i32 s%d, s%d, 15" % (sC + b, sC + b))
        a("s_lshr_b32 s%d, s%d, 4" % (sC + b, sC + b))
    a("s_max_u32 s%d, s%d, s%d" % (sT0, sC, sC + 1))
    for b in range(2, 8):
        a("s_max_u32 s%d, s%d, s%d" % (sT0, sT0, sC + b))
    a.c("shared prefix length")
    a("s_waitcnt vmcnt(9)")
    for c in range(4):
        a("v_sad_u32 %s, %s, %s, 0" % (vr(t0 + c), vr(vT + 4 + c), vr(vT + c)))
    for b in range(2, 8):
        for c in range(4):
            a("v_sad_u32 %s, %s, %s, %s" % (vr(t0 + c), vr(vT + 4 * b + c), vr(vT + c), vr(t0 + c)))
    for c in range(4):
        a("v_cmp_ne_u32 s[%d:%d], 0, %s" % (sMK + 2 * c, sMK + 2 * c + 1, vr(t0 + c)))
    a("s_nop 3")
    for c in range(4):
        a("s_ff1_i32_b64 s%d, s[%d:%d]" % (sJ16 + c, sMK + 2 * c, sMK + 2 * c + 1))
        a("s_lshl2_add_u32 s%d, s%d, %d" % (sJ16 + c, sJ16 + c, c))
    a("s_min_u32 s%d, s%d, s%d" % (sS, sJ16, sJ16 + 1))
    a("s_min_u32 s%d, s%d, s%d" % (sS, sS, sJ16 + 2))
    a("s_min_u32 s%d, s%d, s%d" % (sS, sS, sJ16 + 3))
    a("s_min_u32 s%d, s%d, s%d" % (sS, sS, sT0))
    a("s_mov_b32 s%d, s%d" % (sB, sS))
    for b in range(8):
        a("s_sub_i32 s%d, s%d, s%d" % (sT1, sC + b, sS))
        a("s_max_i32 s%d, s%d, 0" % (sT1, sT1))
        a("s_add_u32 s%d, s%d, s%d" % (sB + b + 1, sB + b, sT1))
        if b >= 1:
            a("s_sub_u32 s%d, s%d, s%d" % (sD + b, sS, sB + b))
            a("s_add_u32 s%d, s%d, %d" % (sD + b, sD + b, 256 * b))
    a("s_cmp_gt_u32 s%d, 1024" % sU)
    a("s_cselect_b32 s%d, 8, 7" % sSH)
    a("s_cselect_b32 s%d, 2, 1" % sNR)
    a("s_mov_b32 s%d, 0" % sR)
    a.c("header for the combine kernel (wg 0, wave 0)")
    a("s_or_b32 s%d, s2, s%d" % (sT0, sW))
    a("s_cmp_lg_u32 s%d, 0" % sT0)
    a("s_cbranch_scc1 A_nohdr")
    a("v_mov_b32 %s, s%d" % (vr(t0), sS))
    a("v_mov_b32 %s, s%d" % (vr(t0 + 1), sU))
    a("v_mov_b32 %s, s%d" % (vr(t0 + 2), sSH))
    a("v_mov_b32 %s, 0" % vr(t0 + 3))
    a("v_mov_b32 %s, 0x%x" % (vr(t4), WS_H))
    a("s_mov_b64 exec, 1")
    a("buffer_store_dwordx4 %s, %s, s[%d:%d], 0 offen" % (vr(t0, 4), vr(t4), SRDW, SRDW + 3))
    for k in range(9):
        a("v_mov_b32 %s, s%d" % (vr(vTMP + 5), sB + k))
        a("buffer_store_dword %s, %s, s[%d:%d], 0 offen offset:%d" % (vr(vTMP + 5), vr(t4), SRDW, SRDW + 3, 16 + 4 * k))
        a("s_nop 1")
    a("s_mov_b64 exec, -1")
    a("s_waitcnt vmcnt(0)")
    a.lab("A_nohdr")
    a.c("ctx per lane")
    a("s_waitcnt vmcnt(8)")
    a("v_cmp_gt_i32 vcc, 1, %s" % vr(vCTXR))
    a("v_mov_b32 %s, 0x1000" % vr(t0))
    a("v_min_i32 %s, 0x1000, %s" % (vr(t1), vr(vCTXR)))
    a("v_cndmask_b32 %s, %s, %s, vcc" % (vr(t1), vr(t1), vr(t0)))
    a("v_lshrrev_b32 %s, 5, v1" % vr(t2))
    a("v_lshlrev_b32 %s, 2, %s" % (vr(t2), vr(t2)))
    a("v_sub_u32 %s, %s, %s" % (vr(vCTXH), vr(t1), vr(t2)))

    a.lab("A_round")
    a("s_lshl_b32 s%d, s%d, 5" % (sT0, sR))
    a("s_add_u32 s%d, s%d, s%d" % (sCH, sI, sT0))
    a("s_lshl2_add_u32 s%d, s%d, s%d" % (sT0, sCH, sW))
    a("s_mul_i32 s%d, s%d, s%d" % (sT1, sT0, sU))
    a("s_add_u32 s%d, s%d, s%d" % (sT2, sT1, sU))
    a("s_lshr_b32 s%d, s%d, s%d" % (sT1, sT1, sSH))
    a("s_lshr_b32 s%d, s%d, s%d" % (sT2, sT2, sSH))
    a("v_add_u32 %s, s%d, v1" % (vr(vX), sT1))
    a("v_mov_b32 %s, 0" % vr(vOFF))
    for b in range(1, 8):
        a("v_cmpx_le_u32 vcc, s%d, %s" % (sB + b, vr(vX)))
        a("v_mov_b32 %s, s%d" % (vr(vOFF), sD + b))
    a("s_mov_b64 exec, -1")
    a("v_add_u32 %s, %s, %s" % (vr(vTT), vr(vX), vr(vOFF)))
    a("v_cmp_gt_u32 vcc, s%d, %s" % (sT2, vr(vX)))
    a("v_lshlrev_b32 %s, 2, %s" % (vr(t0), vr(vTT)))
    a("s_nop 0")
    a("v_cndmask_b32 %s, 0, %s, vcc" % (vr(t0), vr(t0)))
    a("global_load_dword %s, %s, s[%d:%d]" % (vr(vID), vr(t0), sBT, sBT + 1))
    a("v_and_b32 %s, 0xff, %s" % (vr(vJ), vr(vTT)))
    a("v_lshlrev_b32 %s, 4, %s" % (vr(vJ), vr(vJ)))
    a("v_lshrrev_b32 %s, 8, %s" % (vr(t1), vr(vTT)))
    a("v_lshlrev_b32 %s, 2, %s" % (vr(t1), vr(t1)))
    a("v_lshlrev_b32_e64 %s, %s, 15" % (vr(vM32), vr(t1)))
    a("v_cmp_gt_u32 s[%d:%d], s%d, %s" % (sMK, sMK + 1, sS, vr(vX)))
    a("v_mov_b32 %s, -1" % vr(t1))
    a("s_nop 0")
    a("v_cndmask_b32 %s, %s, %s, s[%d:%d]" % (vr(vM32), vr(vM32), vr(t1), sMK, sMK + 1))
    a("v_cndmask_b32 %s, 0, %s, vcc" % (vr(vM32), vr(vM32)))
    a("v_mov_b32 %s, 0x%x" % (vr(t1), NPHYS))
    a("s_waitcnt vmcnt(0)")
    a("v_min_u32 %s, 0x%x, %s" % (vr(vID), NPHYS, vr(vID)))
    a("v_cndmask_b32 %s, %s, %s, vcc" % (vr(vID), vr(t1), vr(vID)))
    a("v_lshlrev_b32 %s, 15, %s" % (vr(vID), vr(vID)))
    a("s_nop 0")
    for u in range(8):
        a("v_readlane_b32 s%d, %s, %d" % (sSOFF + u, vr(vID), u))
    a("s_nop 3")

    def dma(srd, u):
        a("s_add_u32 m0, s%d, %d" % (sWB, u * 4096))
        a("s_nop 0")
        for p in range(4):
            a("buffer_load_dwordx4 %s, s[%d:%d], s%d offen offset:%d lds" % (
                vr(vVOFF + p), srd, srd + 3, sSOFF + u, 1024 * p))

    for u in range(8):
        dma(SRDK, u)
    a.c("per-unit limits")
    for u in range(8):
        a("v_readlane_b32 s%d, %s, %d" % (sJ16 + u, vr(vJ), u))
        a("v_readlane_b32 s%d, %s, %d" % (sMK + 2 * u, vr(vM32), u))
        a("v_readlane_b32 s%d, %s, %d" % (sMK + 2 * u + 1, vr(vM32), u))
    a("s_nop 1")
    for u in range(8):
        a("v_cndmask_b32 %s, 0, %s, s[%d:%d]" % (vr(vLIM + u), vr(vCTXH), sMK + 2 * u, sMK + 2 * u + 1))
    for u in range(8):
        a("v_subrev_u32 %s, s%d, %s" % (vr(vLIM + u), sJ16 + u, vr(vLIM + u)))
    a.c("zero Q of empty-context batches (uniform softmax over all positions)")
    a("v_cmp_lt_i32 vcc, 0, %s" % vr(vCTXR))
    a("s_nop 1")
    for k in range(32):
        a("v_cndmask_b32 %s, 0, %s, vcc" % (vr(vQ + k), vr(vQ + k)))
    a("v_mov_b32 %s, %s" % (vr(vMAX), vr(vNINF)))

    a.c("S phase")
    for t in range(4):
        a("s_waitcnt vmcnt(24)")
        for s in range(8):
            a("ds_read_b128 %s, %s offset:%d" % (vr(vKF + 4 * s, 4), vr(vKA + s), t * 8192))
        for s in range(8):
            a("s_waitcnt lgkmcnt(%d)" % (7 - s))
            a("v_mfma_f32_32x32x16_bf16 %s, %s, %s, %s" % (
                vr(vS + 16 * t, 16), vr(vKF + 4 * s, 4), vr(vQ + 4 * s, 4),
                "0" if s == 0 else vr(vS + 16 * t, 16)))
        if t < 3:
            dma(SRDV, 2 * t)
            dma(SRDV, 2 * t + 1)
            a("s_nop 1")
        else:
            a("s_nop 12")
        for half in range(2):
            u = 2 * t + half
            for r8 in range(8):
                const = 8 * ((r8 >> 2) & 1) + (r8 & 3)
                a("v_cmp_lt_i32 s[%d:%d], %d, %s" % (sMK + 2 * r8, sMK + 2 * r8 + 1, const, vr(vLIM + u)))
            for r8 in range(8):
                r = vS + 16 * t + 8 * half + r8
                a("v_cndmask_b32 %s, %s, %s, s[%d:%d]" % (vr(r), vr(vNINF), vr(r), sMK + 2 * r8, sMK + 2 * r8 + 1))
            for r8 in range(0, 8, 2):
                r = vS + 16 * t + 8 * half + r8
                a("v_max3_f32 %s, %s, %s, %s" % (vr(vMAX), vr(vMAX), vr(r), vr(r + 1)))
    a.c("max exchange")
    a("v_mov_b32 %s, %s" % (vr(t0), vr(vMAX)))
    a("s_nop 1")
    a("v_permlane32_swap_b32 %s, %s" % (vr(vMAX), vr(t0)))
    a("s_nop 1")
    a("v_max_f32 %s, %s, %s" % (vr(vMAX), vr(vMAX), vr(t0)))
    a("v_and_b32 %s, 31, v1" % vr(t1))
    a("v_lshlrev_b32 %s, 2, %s" % (vr(t1), vr(t1)))
    a("v_add_u32 %s, %d, %s" % (vr(t1), 3 * 8192, vr(t1)))
    a("v_add_u32 %s, s%d, %s" % (vr(t2), sWB, vr(t1)))
    a("ds_write_b32 %s, %s" % (vr(t2), vr(vMAX)))
    a("v_add_u32 %s, 0x10000, %s" % (vr(t2), vr(t1)))
    a("s_waitcnt lgkmcnt(0)")
    a("s_barrier")
    a("ds_read_b32 %s, %s" % (vr(t4), vr(t1)))
    a("ds_read_b32 %s, %s offset:32768" % (vr(t4 + 1), vr(t1)))
    a("ds_read_b32 %s, %s" % (vr(t4 + 2), vr(t2)))
    a("ds_read_b32 %s, %s offset:32768" % (vr(t4 + 3), vr(t2)))
    a("s_waitcnt lgkmcnt(0)")
    a("v_max3_f32 %s, %s, %s, %s" % (vr(vMAX), vr(t4), vr(t4 + 1), vr(t4 + 2)))
    a("v_mov_b32 %s, %s" % (vr(t0), f32hex(-1e30)))
    a("v_max3_f32 %s, %s, %s, %s" % (vr(vMAX), vr(vMAX), vr(t4 + 3), vr(t0)))
    a("s_mov_b32 s%d, %s" % (sT0, f32hex(SCALE_LOG2)))
    a("v_mul_f32 %s, %s, %s" % (vr(vNMC), f32hex(-SCALE_LOG2), vr(vMAX)))
    a.c("P phase")
    for u in range(8):
        base = vS + 8 * u
        for k in range(8):
            a("v_fma_f32 %s, %s, s%d, %s" % (vr(base + k), vr(base + k), sT0, vr(vNMC)))
        for k in range(8):
            a("v_exp_f32 %s, %s" % (vr(base + k), vr(base + k)))
        pk = vTMP + 4 * (u & 1)
        for k in range(4):
            a("v_cvt_pk_bf16_f32 %s, %s, %s" % (vr(pk + k), vr(base + 2 * k), vr(base + 2 * k + 1)))
        a("ds_write_b128 %s, %s offset:%d" % (vr(vPW), vr(pk, 4), u * 1024))
    a("s_waitcnt lgkmcnt(0)")
    a("s_barrier")
    dma(SRDV, 6)
    dma(SRDV, 7)
    a.c("PV phase")
    for t in range(4):
        for w in range(4):
            for s in range(2):
                a("ds_read_b128 %s, %s offset:%d" % (vr(vKF + 4 * (2 * w + s), 4), vr(vPR), (w * 8 + 2 * t + s) * 1024))
        for k in range(8):
            a("s_waitcnt lgkmcnt(%d)" % (7 - k))
            a("v_mfma_f32_32x32x16_bf16 %s, %s, %s, %s" % (
                vr(vACL, 16), vr(vKF + 4 * k, 4), vr(vONE, 4),
                "0" if (t == 0 and k == 0) else vr(vACL, 16)))
        a("s_waitcnt vmcnt(%d)" % (24 - 8 * t))
        a("s_barrier")
        for w in range(4):
            for s in range(2):
                k = 2 * w + s
                for u in range(2):
                    a("ds_read_b64_tr_b16 %s, %s offset:%d" % (
                        vr(vVF + 4 * k + 2 * u, 2), vr(vVA + 2 * (w >> 1) + u),
                        (w & 1) * 32768 + t * 8192 + s * 4096))
        for k in range(8):
            a("s_waitcnt lgkmcnt(%d)" % (14 - 2 * k))
            a("v_mfma_f32_32x32x16_bf16 %s, %s, %s, %s" % (
                vr(vACO, 16), vr(vKF + 4 * k, 4), vr(vVF + 4 * k, 4),
                "0" if (t == 0 and k == 0) else vr(vACO, 16)))
    a.c("relevance mask of the 8 batches for this chunk")
    sU0, sU1, sREL = sJ16, sJ16 + 1, sJ16 + 2
    a("s_lshl_b32 s%d, s%d, 2" % (sT0, sCH))
    a("s_mul_i32 s%d, s%d, s%d" % (sU0, sT0, sU))
    a("s_lshl2_add_u32 s%d, s%d, s%d" % (sU1, sU, sU0))
    a("s_lshr_b32 s%d, s%d, s%d" % (sU0, sU0, sSH))
    a("s_lshr_b32 s%d, s%d, s%d" % (sU1, sU1, sSH))
    a("s_mov_b32 s%d, 0" % sREL)
    for b in range(8):
        a("s_cmp_lt_u32 s%d, s%d" % (sU0, sB + b + 1))
        a("s_cselect_b32 s%d, %d, 0" % (sT0, 1 << b))
        a("s_cmp_gt_u32 s%d, s%d" % (sU1, sB + b))
        a("s_cselect_b32 s%d, s%d, 0" % (sT0, sT0))
        a("s_or_b32 s%d, s%d, s%d" % (sREL, sREL, sT0))
    a("s_cmp_lt_u32 s%d, s%d" % (sU0, sS))
    a("s_cselect_b32 s%d, 0xff, s%d" % (sREL, sREL))
    a("s_lshl_b32 s%d, s%d, 6" % (sT0, sG))
    a("s_add_u32 s%d, s%d, s%d" % (sT0, sT0, sCH))
    a("s_lshl_b32 s%d, s%d, 14" % (sT1, sT0))
    a("s_add_u32 s%d, s%d, 0x%x" % (sT1, sT1, WS_O))
    for gq in range(4):
        a("s_bfe_i32 exec_lo, s%d, 0x%x" % (sREL, 0x10000 | (2 * gq)))
        a("s_bfe_i32 exec_hi, s%d, 0x%x" % (sREL, 0x10000 | (2 * gq + 1)))
        a("s_add_u32 s%d, s%d, %d" % (sT2, sT1, gq * 4096))
        a("s_cbranch_execz A_skipo%d" % gq)
        a("buffer_store_dwordx4 %s, %s, s[%d:%d], s%d offen" % (vr(vACO + 4 * gq, 4), vr(vOOFF), SRDW, SRDW + 3, sT2))
        a.lab("A_skipo%d" % gq)
    a("s_mov_b64 exec, -1")
    a("s_cmp_lg_u32 s%d, 0" % sW)
    a("s_cbranch_scc1 A_noml")
    a("s_lshl_b32 s%d, s%d, 7" % (sT1, sT0))
    a("v_and_b32 %s, 31, v1" % vr(t0))
    a("v_lshlrev_b32 %s, 2, %s" % (vr(t0), vr(t0)))
    a("s_add_u32 s%d, s%d, 0x%x" % (sT2, sT1, WS_M))
    a("buffer_store_dword %s, %s, s[%d:%d], s%d offen" % (vr(vMAX), vr(t0), SRDW, SRDW + 3, sT2))
    a("v_lshrrev_b32 %s, 5, v1" % vr(t1))
    a("v_lshlrev_b32 %s, 4, %s" % (vr(t1), vr(t1)))
    a("s_add_u32 s%d, s%d, 0x%x" % (sT2, sT1, WS_L))
    a("s_mov_b32 exec_lo, 1")
    a("s_mov_b32 exec_hi, 1")
    for gq in range(4):
        a("buffer_store_dwordx4 %s, %s, s[%d:%d], s%d offen offset:%d" % (
            vr(vACL + 4 * gq, 4), vr(t1), SRDW, SRDW + 3, sT2, gq * 32))
    a("s_mov_b64 exec, -1")
    a.lab("A_noml")
    a("s_add_u32 s%d, s%d, 1" % (sR, sR))
    a("s_cmp_ge_u32 s%d, s%d" % (sR, sNR))
    a("s_cbranch_scc1 A_end")
    a("s_waitcnt vmcnt(0)")
    a("s_barrier")
    a("s_branch A_round")
    a.lab("A_end")
    a("s_endpgm")


def kernel_b(a):
    sOUT, sWS = 4, 8
    SRDW, SRDO = 12, 16
    sS, sU, sSH = 20, 21, 22
    sB0, sB1 = 24, 25
    sG, sBt, sW = 26, 27, 28
    sN1, sA2, sN, sK = 29, 30, 31, 32
    sT0, sT1, sT2, sT3 = 33, 34, 35, 36
    sM = 40
    vL, vH, vD = 1, 2, 3
    vT0, vT1, vT2, vT3 = 4, 5, 6, 7
    vST = 8
    vMR = 12
    vOA = 16
    vLA = 20
    vOO = 24
    vNM = 28
    vW = 32
    vDAT = 40
    NP = 8
    vVAL = 136
    a.lab("attn_comb_kernel")
    a("s_cmp_ge_u32 s2, 64")
    a("s_cbranch_scc1 B_end")
    a("s_load_dwordx2 s[4:5], s[0:1], 40")
    a("s_load_dwordx2 s[8:9], s[0:1], 56")
    a("s_and_b32 s%d, s2, 7" % sG)
    a("s_lshr_b32 s%d, s2, 3" % sBt)
    a("v_and_b32 %s, 63, v0" % vr(vL))
    a("v_lshrrev_b32 %s, 6, v0" % vr(vT0))
    a("v_lshrrev_b32 %s, 5, %s" % (vr(vH), vr(vL)))
    a("v_readfirstlane_b32 s%d, %s" % (sW, vr(vT0)))
    a("v_and_b32 %s, 31, %s" % (vr(vD), vr(vL)))
    a("s_lshl_b32 s%d, s%d, 2" % (sT0, sBt))
    a("s_add_u32 s%d, s%d, 0x%x" % (sT0, sT0, WS_H + 16))
    a("s_waitcnt lgkmcnt(0)")
    a("s_load_dwordx4 s[20:23], s[8:9], 0x%x" % WS_H)
    a("s_load_dwordx2 s[24:25], s[8:9], s%d" % sT0)
    for srd, p, n in ((SRDW, sWS, WS_SIZE), (SRDO, sOUT, 65536)):
        a("s_mov_b32 s%d, s%d" % (srd, p))
        a("s_and_b32 s%d, s%d, 0xffff" % (srd + 1, p + 1))
        a("s_mov_b32 s%d, 0x%x" % (srd + 2, n))
        a("s_mov_b32 s%d, 0x20000" % (srd + 3))
    a("s_lshl_b32 s%d, s%d, 9" % (sT1, sW))
    a("v_lshlrev_b32 %s, 4, %s" % (vr(vOO), vr(vD)))
    a("s_add_u32 s%d, s%d, 0x%x" % (sT1, sT1, WS_O))
    a("v_add_u32 %s, s%d, %s" % (vr(vOO), sT1, vr(vOO)))
    for k in range(4):
        a("v_mov_b32 %s, %s" % (vr(vMR + k), f32hex(-1e30)))
        a("v_mov_b32 %s, 0" % vr(vOA + k))
        a("v_mov_b32 %s, 0" % vr(vLA + k))
    a("s_waitcnt lgkmcnt(0)")
    a("v_lshlrev_b32 %s, 2, %s" % (vr(vST), vr(vL)))
    a("v_mul_lo_u32 %s, %s, s%d" % (vr(vST), vr(vST), sU))
    a("v_lshrrev_b32 %s, s%d, %s" % (vr(vST), sSH, vr(vST)))
    a("s_sub_u32 s%d, s%d, 2" % (sT0, sSH))
    a("s_lshl_b32 s%d, 1, s%d" % (sT0, sT0))
    a("v_cmp_gt_u32 s[%d:%d], s%d, %s" % (sM, sM + 1, sT0, vr(vL)))
    a("v_cmp_gt_u32 vcc, s%d, %s" % (sS, vr(vST)))
    a("s_and_b64 vcc, vcc, s[%d:%d]" % (sM, sM + 1))
    a("s_bcnt1_i32_b64 s%d, vcc" % sN1)
    a("v_cmp_ge_u32 vcc, s%d, %s" % (sB0, vr(vST)))
    a("s_and_b64 vcc, vcc, s[%d:%d]" % (sM, sM + 1))
    a("s_bcnt1_i32_b64 s%d, vcc" % sA2)
    a("s_sub_u32 s%d, s%d, 1" % (sA2, sA2))
    a("s_max_u32 s%d, s%d, s%d" % (sA2, sA2, sN1))
    a("v_cmp_gt_u32 vcc, s%d, %s" % (sB1, vr(vST)))
    a("s_and_b64 vcc, vcc, s[%d:%d]" % (sM, sM + 1))
    a("s_bcnt1_i32_b64 s%d, vcc" % sT1)
    a("s_sub_i32 s%d, s%d, s%d" % (sT1, sT1, sA2))
    a("s_max_i32 s%d, s%d, 0" % (sT1, sT1))
    a("s_cmp_gt_u32 s%d, s%d" % (sB1, sB0))
    a("s_cselect_b32 s%d, s%d, 0" % (sT1, sT1))
    a("s_add_u32 s%d, s%d, s%d" % (sN, sN1, sT1))
    a("s_sub_u32 s%d, s%d, s%d" % (sA2, sA2, sN1))
    a("s_mov_b32 s%d, 0" % sK)
    a("s_lshl_b32 s%d, s%d, 6" % (sG, sG))
    a("s_mov_b32 s%d, %s" % (sT3, f32hex(SCALE_LOG2)))
    a.lab("B_loop")
    for p in range(NP):
        d = vDAT + 12 * p
        a("v_add_u32 %s, s%d, %s" % (vr(vT0), sK, vr(vH)))
        if p:
            a("v_add_u32 %s, %d, %s" % (vr(vT0), 2 * p, vr(vT0)))
        a("v_add_u32 %s, s%d, %s" % (vr(vT1), sA2, vr(vT0)))
        a("v_cmp_gt_u32 vcc, s%d, %s" % (sN1, vr(vT0)))
        a("v_cmp_gt_u32 s[%d:%d], s%d, %s" % (sM + 2 + 2 * p, sM + 3 + 2 * p, sN, vr(vT0)))
        a("s_nop 0")
        a("v_cndmask_b32 %s, %s, %s, vcc" % (vr(vT1), vr(vT1), vr(vT0)))
        a("v_add_u32 %s, s%d, %s" % (vr(vT1), sG, vr(vT1)))
        a("v_lshlrev_b32 %s, 3, %s" % (vr(vT2), vr(vT1)))
        a("v_add_u32 %s, s%d, %s" % (vr(vT2), sBt, vr(vT2)))
        a("v_lshl_add_u32 %s, %s, 11, %s" % (vr(vT3), vr(vT2), vr(vOO)))
        a("v_lshlrev_b32 %s, 4, %s" % (vr(vT2), vr(vT2)))
        a("v_mov_b32 %s, 0x%x" % (vr(vT1), 0x7fffff00))
        a("v_cndmask_b32 %s, %s, %s, s[%d:%d]" % (vr(vT3), vr(vT1), vr(vT3), sM + 2 + 2 * p, sM + 3 + 2 * p))
        a("v_add_u32 %s, 0x%x, %s" % (vr(vT2), WS_M, vr(vT2)))
        a("v_cndmask_b32 %s, %s, %s, s[%d:%d]" % (vr(vT2), vr(vT1), vr(vT2), sM + 2 + 2 * p, sM + 3 + 2 * p))
        a("buffer_load_dwordx4 %s, %s, s[%d:%d], 0 offen" % (vr(d, 4), vr(vT3), SRDW, SRDW + 3))
        a("buffer_load_dwordx4 %s, %s, s[%d:%d], 0 offen" % (vr(d + 4, 4), vr(vT2), SRDW, SRDW + 3))
        a("v_add_u32 %s, 0x%x, %s" % (vr(vT3), WS_L - WS_M, vr(vT2)))
        a("buffer_load_dwordx4 %s, %s, s[%d:%d], 0 offen" % (vr(d + 8, 4), vr(vT3), SRDW, SRDW + 3))
    a("s_waitcnt vmcnt(0)")
    a("v_mov_b32 %s, %s" % (vr(vT0), f32hex(-1e30)))
    for p in range(NP):
        d = vDAT + 12 * p
        for k in range(4):
            a("v_cndmask_b32 %s, %s, %s, s[%d:%d]" % (vr(d + 4 + k), vr(vT0), vr(d + 4 + k), sM + 2 + 2 * p, sM + 3 + 2 * p))
    for k in range(4):
        a("v_mov_b32 %s, %s" % (vr(vNM + k), vr(vMR + k)))
    for p in range(0, NP, 2):
        for k in range(4):
            a("v_max3_f32 %s, %s, %s, %s" % (vr(vNM + k), vr(vNM + k), vr(vDAT + 12 * p + 4 + k), vr(vDAT + 12 * (p + 1) + 4 + k)))
    for k in range(4):
        a("v_sub_f32 %s, %s, %s" % (vr(vW + k), vr(vMR + k), vr(vNM + k)))
    for k in range(4):
        a("v_mul_f32 %s, s%d, %s" % (vr(vW + k), sT3, vr(vW + k)))
    for k in range(4):
        a("v_exp_f32 %s, %s" % (vr(vW + k), vr(vW + k)))
    a("s_nop 0")
    for k in range(4):
        a("v_mul_f32 %s, %s, %s" % (vr(vOA + k), vr(vOA + k), vr(vW + k)))
        a("v_mul_f32 %s, %s, %s" % (vr(vLA + k), vr(vLA + k), vr(vW + k)))
        a("v_mov_b32 %s, %s" % (vr(vMR + k), vr(vNM + k)))
    for p in range(NP):
        d = vDAT + 12 * p
        for k in range(4):
            a("v_sub_f32 %s, %s, %s" % (vr(vW + k), vr(d + 4 + k), vr(vNM + k)))
        for k in range(4):
            a("v_mul_f32 %s, s%d, %s" % (vr(vW + k), sT3, vr(vW + k)))
        for k in range(4):
            a("v_exp_f32 %s, %s" % (vr(vW + k), vr(vW + k)))
        a("s_nop 0")
        for k in range(4):
            a("v_fma_f32 %s, %s, %s, %s" % (vr(vOA + k), vr(vW + k), vr(d + k), vr(vOA + k)))
            a("v_fma_f32 %s, %s, %s, %s" % (vr(vLA + k), vr(vW + k), vr(d + 8 + k), vr(vLA + k)))
    a("s_add_u32 s%d, s%d, %d" % (sK, sK, 2 * NP))
    a("s_cmp_lt_u32 s%d, s%d" % (sK, sN))
    a("s_cbranch_scc1 B_loop")
    X = vDAT
    for k in range(4):
        a("v_mov_b32 %s, %s" % (vr(X + k), vr(vMR + k)))
        a("v_mov_b32 %s, %s" % (vr(X + 4 + k), vr(vMR + k)))
    a("s_nop 1")
    for k in range(4):
        a("v_permlane32_swap_b32 %s, %s" % (vr(X + k), vr(X + 4 + k)))
    a("s_nop 1")
    for k in range(4):
        a("v_max_f32 %s, %s, %s" % (vr(vNM + k), vr(X + k), vr(X + 4 + k)))
    for k in range(4):
        a("v_sub_f32 %s, %s, %s" % (vr(vW + k), vr(vMR + k), vr(vNM + k)))
    for k in range(4):
        a("v_mul_f32 %s, s%d, %s" % (vr(vW + k), sT3, vr(vW + k)))
    for k in range(4):
        a("v_exp_f32 %s, %s" % (vr(vW + k), vr(vW + k)))
    a("s_nop 0")
    for k in range(4):
        a("v_mul_f32 %s, %s, %s" % (vr(vOA + k), vr(vOA + k), vr(vW + k)))
        a("v_mul_f32 %s, %s, %s" % (vr(vLA + k), vr(vLA + k), vr(vW + k)))
    for k in range(4):
        a("v_mov_b32 %s, %s" % (vr(X + k), vr(vOA + k)))
        a("v_mov_b32 %s, %s" % (vr(X + 4 + k), vr(vLA + k)))
    a("s_nop 1")
    for k in range(4):
        a("v_permlane32_swap_b32 %s, %s" % (vr(X + k), vr(vOA + k)))
        a("v_permlane32_swap_b32 %s, %s" % (vr(X + 4 + k), vr(vLA + k)))
    a("s_nop 1")
    for k in range(4):
        a("v_add_f32 %s, %s, %s" % (vr(vOA + k), vr(vOA + k), vr(X + k)))
        a("v_add_f32 %s, %s, %s" % (vr(vLA + k), vr(vLA + k), vr(X + 4 + k)))
    for k in range(4):
        a("v_rcp_f32 %s, %s" % (vr(vLA + k), vr(vLA + k)))
    a("s_nop 0")
    for k in range(4):
        a("v_mul_f32 %s, %s, %s" % (vr(vOA + k), vr(vOA + k), vr(vLA + k)))
    a("v_cmp_eq_u32 vcc, 0, %s" % vr(vH))
    a("s_nop 1")
    a("v_cndmask_b32 %s, %s, %s, vcc" % (vr(vT0), vr(vOA + 2), vr(vOA)))
    a("v_cndmask_b32 %s, %s, %s, vcc" % (vr(vT1), vr(vOA + 3), vr(vOA + 1)))
    a("v_cvt_pk_bf16_f32 %s, %s, %s" % (vr(vT0), vr(vT0), vr(vT1)))
    a("s_lshl_b32 s%d, s%d, 13" % (sT0, sBt))
    a("s_lshl_b32 s%d, s%d, 4" % (sT1, sG))
    a("s_add_u32 s%d, s%d, s%d" % (sT0, sT0, sT1))
    a("s_lshl_b32 s%d, s%d, 6" % (sT1, sW))
    a("s_add_u32 s%d, s%d, s%d" % (sT0, sT0, sT1))
    a("v_lshlrev_b32 %s, 9, %s" % (vr(vT2), vr(vH)))
    a("v_lshl_add_u32 %s, %s, 1, %s" % (vr(vT2), vr(vD), vr(vT2)))
    a("buffer_store_short %s, %s, s[%d:%d], s%d offen" % (vr(vT0), vr(vT2), SRDO, SRDO + 3, sT0))
    a("buffer_store_short_d16_hi %s, %s, s[%d:%d], s%d offen offset:256" % (vr(vT0), vr(vT2), SRDO, SRDO + 3, sT0))
    a.lab("B_end")
    a("s_endpgm")


def kd(name, vg, sg):
    return """.amdhsa_kernel %s
  .amdhsa_next_free_vgpr %d
  .amdhsa_next_free_sgpr %d
  .amdhsa_accum_offset %d
  .amdhsa_group_segment_fixed_size 0
  .amdhsa_kernarg_size 64
  .amdhsa_user_sgpr_count 2
  .amdhsa_user_sgpr_kernarg_segment_ptr 1
  .amdhsa_system_sgpr_workgroup_id_x 1
.end_amdhsa_kernel
""" % (name, vg, sg, (vg + 3) // 4 * 4)


def main(out):
    s = HEADER
    s += "; @launch kernel=attn_part_kernel grid=(256,1,1) block=(256,1,1) lds=163840\n"
    s += "; @launch kernel=attn_comb_kernel grid=(64,1,1) block=(256,1,1) lds=0\n"
    s += '.amdgcn_target "amdgcn-amd-amdhsa--gfx950"\n.text\n'
    for name, fn in (("attn_part_kernel", kernel_a), ("attn_comb_kernel", kernel_b)):
        a = A()
        fn(a)
        s += ".globl %s\n.p2align 8\n.type %s,@function\n" % (name, name) + a.text()
    s += '.section .rodata,"a"\n.p2align 6\n'
    s += kd("attn_part_kernel", 256, 102)
    s += ".p2align 6\n"
    s += kd("attn_comb_kernel", 144, 64)
    open(out, "w").write(s)


if __name__ == "__main__":
    main(sys.argv[1] if len(sys.argv) > 1 else "cdna_kernels/%s.s" % NAME)
```

```python
import struct
import sys

NAME = "standalone__paged_block_table_kv_radixattention__sampling"

HEADER = """; Kernarg layout for this problem (64 bytes, ptrs only, base s[0:1]):
"""

NPHYS = 1152
KV_BYTES = NPHYS * 32768
WS_ML = 0
WS_STAMP = 512 << 10
WS_O = 1 << 20
WS_SIZE = WS_O + (16 << 20)
SCALE_LOG2 = 0.08838834764831845 * 1.4426950408889634
PRED_CTX = [4096 - (i * 2654435761) % 1024 for i in range(1, 9)]
PRED_S = 128
NSLOT = 12

OPT = dict(stamps=False, nt=True, prewarm=True)


def f32hex(x):
    return "0x%08x" % struct.unpack("<I", struct.pack("<f", x))[0]


class A:
    def __init__(self):
        self.l = []
        self.nstamp = 0

    def __call__(self, s):
        self.l.append("    " + s)

    def lab(self, s):
        self.l.append(s + ":")

    def c(self, s):
        self.l.append("    ; " + s)

    def text(self):
        return "\n".join(self.l) + "\n"


def vr(a, n=1):
    return "v%d" % a if n == 1 else "v[%d:%d]" % (a, a + n - 1)


def sp(a):
    return "s[%d:%d]" % (a, a + 1)


def sq(a):
    return "s[%d:%d]" % (a, a + 3)


def kernel(a):
    sMODE = 3
    sQ, sK, sV, sBT, sCTX, sOUT, sDBG, sWS = 4, 6, 8, 10, 12, 14, 16, 18
    sNONCE = 6
    sBAD = 8
    SRDK, SRDV, SRDW = 20, 24, 28
    sC = 32
    sB = 40
    sD = 49
    sSTP = 0
    sG, sI, sW, sS, sSH, sNR, sR = 57, 58, 59, 60, 61, 62, 63
    sSOFF = 64
    sJ16 = 72
    sMK = 80
    sT0, sT1, sT2, sT3 = 96, 97, 98, 99
    sWB, sCH = 100, 101
    sU = sB + 8
    vVOFF = 2
    vKA = 6
    vVA = 14
    vPW, vPR = 18, 19
    vCTXH, vCTXR = 20, 21
    vLIM = 22
    vMAX, vNINF = 30, 31
    vQ = 32
    vS = 64
    vKF = 128
    vVF = 160
    vT = 160
    vTMP = 192
    vONE = 208
    vOOFF = 212
    vX, vOFF, vTT, vM32, vJ, vID = 213, 214, 215, 216, 217, 218
    vNMC = 219
    vNON = 220
    vZERO = 222
    vST = 223
    vACO = 224
    vACL = 240
    t0, t1, t2, t3, t4, t5 = (vTMP + k for k in range(6))
    NT = " nt" if OPT["nt"] else ""

    def stamp():
        if not OPT["stamps"]:
            return
        a("s_memrealtime %s" % sp(sSTP))
        a("s_waitcnt lgkmcnt(0)")
        a("v_writelane_b32 %s, s%d, %d" % (vr(vST), sSTP, a.nstamp))
        a.nstamp += 1

    def chain():
        a("v_mov_b32 %s, 0" % vr(vOFF))
        for b in range(1, 8):
            a("v_cmpx_le_u32 vcc, s%d, %s" % (sB + b, vr(vX)))
            a("v_mov_b32 %s, s%d" % (vr(vOFF), sD + b))
        a("s_mov_b64 exec, -1")
        a("v_add_u32 %s, %s, %s" % (vr(vTT), vr(vX), vr(vOFF)))

    def chunk_index():
        a("s_lshl_b32 s%d, s%d, 5" % (sT0, sR))
        a("s_add_u32 s%d, s%d, s%d" % (sCH, sI, sT0))

    def decode8():
        chunk_index()
        a("s_lshl2_add_u32 s%d, s%d, s%d" % (sT0, sCH, sW))
        a("s_mul_i32 s%d, s%d, s%d" % (sT1, sT0, sU))
        a("s_add_u32 s%d, s%d, s%d" % (sT2, sT1, sU))
        a("s_lshr_b32 s%d, s%d, s%d" % (sT1, sT1, sSH))
        a("s_lshr_b32 s%d, s%d, s%d" % (sT2, sT2, sSH))
        a("v_add_u32 %s, s%d, v1" % (vr(vX), sT1))
        chain()
        a("v_cmp_gt_u32 vcc, s%d, %s" % (sT2, vr(vX)))

    def decode32():
        chunk_index()
        a("s_lshl_b32 s%d, s%d, 2" % (sT0, sCH))
        a("v_lshrrev_b32 %s, 3, v1" % vr(t0))
        a("v_add_u32 %s, s%d, %s" % (vr(t0), sT0, vr(t0)))
        a("v_mul_lo_u32 %s, %s, s%d" % (vr(t0), vr(t0), sU))
        a("v_add_u32 %s, s%d, %s" % (vr(t1), sU, vr(t0)))
        a("v_lshrrev_b32 %s, s%d, %s" % (vr(t0), sSH, vr(t0)))
        a("v_lshrrev_b32 %s, s%d, %s" % (vr(t1), sSH, vr(t1)))
        a("v_and_b32 %s, 7, v1" % vr(t2))
        a("v_add_u32 %s, %s, %s" % (vr(vX), vr(t0), vr(t2)))
        chain()
        a("v_cmp_gt_u32 vcc, %s, %s" % (vr(t1), vr(vX)))

    def maskinfo():
        a("v_and_b32 %s, 0xff, %s" % (vr(vJ), vr(vTT)))
        a("v_lshlrev_b32 %s, 4, %s" % (vr(vJ), vr(vJ)))
        a("v_lshrrev_b32 %s, 8, %s" % (vr(t1), vr(vTT)))
        a("v_lshlrev_b32 %s, 2, %s" % (vr(t1), vr(t1)))
        a("v_lshlrev_b32_e64 %s, %s, 15" % (vr(vM32), vr(t1)))
        a("v_cmp_gt_u32 %s, s%d, %s" % (sp(sMK), sS, vr(vX)))
        a("v_mov_b32 %s, -1" % vr(t1))
        a("s_nop 0")
        a("v_cndmask_b32 %s, %s, %s, %s" % (vr(vM32), vr(vM32), vr(t1), sp(sMK)))
        a("v_cndmask_b32 %s, 0, %s, vcc" % (vr(vM32), vr(vM32)))

    def ids_to_soff():
        a("v_mov_b32 %s, 0x%x" % (vr(t1), NPHYS))
        a("v_min_u32 %s, 0x%x, %s" % (vr(vID), NPHYS, vr(vID)))
        a("v_cndmask_b32 %s, %s, %s, vcc" % (vr(vID), vr(t1), vr(vID)))
        a("v_lshlrev_b32 %s, 15, %s" % (vr(vID), vr(vID)))

    def partition():
        vTO = vTMP + 8
        a("s_mov_b32 s%d, 0" % sMODE)
        a("s_mov_b32 s%d, 0" % sBAD)
        a("s_load_dwordx8 s[%d:%d], %s, 0" % (sC, sC + 7, sp(sCTX)))
        a("v_lshlrev_b32 %s, 4, v1" % vr(vTO))
        a("v_add_u32 %s, 0x1000, %s" % (vr(vTO + 1), vr(vTO)))
        for b in range(8):
            a("global_load_dwordx4 %s, %s, %s offset:%d" % (
                vr(vT + 4 * b, 4), vr(vTO if b < 4 else vTO + 1), sp(sBT), (b & 3) * 1024))
        a("s_waitcnt lgkmcnt(0)")
        for b in range(8):
            a("s_cmp_lt_i32 s%d, 1" % (sC + b))
            a("s_cselect_b32 s%d, 0x1000, s%d" % (sC + b, sC + b))
            a("s_min_i32 s%d, s%d, 0x1000" % (sC + b, sC + b))
            a("s_add_i32 s%d, s%d, 15" % (sC + b, sC + b))
            a("s_lshr_b32 s%d, s%d, 4" % (sC + b, sC + b))
        a("s_max_u32 s%d, s%d, s%d" % (sT0, sC, sC + 1))
        for b in range(2, 8):
            a("s_max_u32 s%d, s%d, s%d" % (sT0, sT0, sC + b))
        a("s_waitcnt vmcnt(0)")
        for c in range(4):
            a("v_sad_u32 %s, %s, %s, 0" % (vr(t0 + c), vr(vT + 4 + c), vr(vT + c)))
        for b in range(2, 8):
            for c in range(4):
                a("v_sad_u32 %s, %s, %s, %s" % (vr(t0 + c), vr(vT + 4 * b + c), vr(vT + c), vr(t0 + c)))
        for c in range(4):
            a("v_cmp_ne_u32 %s, 0, %s" % (sp(sMK + 2 * c), vr(t0 + c)))
        a("s_nop 3")
        for c in range(4):
            a("s_ff1_i32_b64 s%d, %s" % (sJ16 + c, sp(sMK + 2 * c)))
            a("s_lshl2_add_u32 s%d, s%d, %d" % (sJ16 + c, sJ16 + c, c))
        a("s_min_u32 s%d, s%d, s%d" % (sS, sJ16, sJ16 + 1))
        a("s_min_u32 s%d, s%d, s%d" % (sS, sS, sJ16 + 2))
        a("s_min_u32 s%d, s%d, s%d" % (sS, sS, sJ16 + 3))
        a("s_min_u32 s%d, s%d, s%d" % (sS, sS, sT0))
        a("s_mov_b32 s%d, s%d" % (sB, sS))
        for b in range(8):
            a("s_sub_i32 s%d, s%d, s%d" % (sT1, sC + b, sS))
            a("s_max_i32 s%d, s%d, 0" % (sT1, sT1))
            a("s_add_u32 s%d, s%d, s%d" % (sB + b + 1, sB + b, sT1))
            if b >= 1:
                a("s_sub_u32 s%d, s%d, s%d" % (sD + b, sS, sB + b))
                a("s_add_u32 s%d, s%d, %d" % (sD + b, sD + b, 256 * b))
        a("s_cmp_gt_u32 s%d, 1024" % sU)
        a("s_cselect_b32 s%d, 8, 7" % sSH)
        a("s_cselect_b32 s%d, 2, 1" % sNR)
        a("s_mov_b32 s%d, 0" % sR)

    def srd(dst, p, n):
        a("s_mov_b32 s%d, s%d" % (dst, p))
        a("s_and_b32 s%d, s%d, 0xffff" % (dst + 1, p + 1))
        a("s_mov_b32 s%d, 0x%x" % (dst + 2, n))
        a("s_mov_b32 s%d, 0x20000" % (dst + 3))

    def nonce_wait(tag):
        a.lab("L_noncewait" + tag)
        a("v_readfirstlane_b32 s%d, %s" % (sNONCE, vr(vNON)))
        a("v_readfirstlane_b32 s%d, %s" % (sNONCE + 1, vr(vNON + 1)))
        a("s_nop 1")
        a("s_cmp_lg_u32 s%d, 0" % sNONCE)
        a("s_cbranch_scc1 L_nonceok" + tag)
        a("s_sleep 2")
        a("global_load_dwordx2 %s, %s, %s sc1" % (vr(vNON, 2), vr(vZERO), sp(sDBG)))
        a("s_waitcnt vmcnt(0)")
        a("s_branch L_noncewait" + tag)
        a.lab("L_nonceok" + tag)

    def stampout(nw):
        a("s_mul_i32 s96, s2, 5")
        a("s_add_u32 s96, s96, s%d" % sW)
        a("s_lshl_b32 s96, s96, 6")
        a("s_add_u32 s96, s96, 0x%x" % WS_STAMP)
        a("v_lshlrev_b32 %s, 2, v1" % vr(t0))
        a("s_mov_b64 exec, 0xffff")
        a("buffer_store_dword %s, %s, %s, s96 offen" % (vr(vST), vr(t0), sq(SRDW)))
        a("s_endpgm")

    a.lab(NAME + "_kernel")
    a("s_cmp_ge_u32 s2, 256")
    a("s_cbranch_scc1 L_end")
    a("s_load_dwordx16 s[4:19], s[0:1], 0")
    a("v_and_b32 v1, 63, v0")
    a("v_lshrrev_b32 v2, 6, v0")
    a("s_and_b32 s%d, s2, 7" % sG)
    a("s_lshr_b32 s%d, s2, 3" % sI)
    a("v_readfirstlane_b32 s%d, v2" % sW)
    if OPT["stamps"]:
        a("v_mov_b32 %s, 0" % vr(vST))
        a("s_memrealtime %s" % sp(96))
        a("s_waitcnt lgkmcnt(0)")
        a("v_writelane_b32 %s, s96, 0" % vr(vST))
        a.nstamp = 1
    a.c("predicted partition (verified against the real table / lengths below)")
    nb = [(c + 15) // 16 for c in PRED_CTX]
    B = [PRED_S]
    for b in range(8):
        B.append(B[-1] + max(nb[b] - PRED_S, 0))
    a("s_mov_b32 s%d, %d" % (sS, PRED_S))
    for k in range(9):
        a("s_mov_b32 s%d, %d" % (sB + k, B[k]))
    for b in range(1, 8):
        a("s_mov_b32 s%d, %d" % (sD + b, PRED_S - B[b] + 256 * b))
    a("s_mov_b32 s%d, 7" % sSH)
    a("s_mov_b32 s%d, 1" % sNR)
    a("s_mov_b32 s%d, 0" % sR)
    a("s_mov_b32 s%d, 1" % sMODE)
    a("v_mov_b32 %s, 0" % vr(vZERO))
    a("s_cmp_eq_u32 s%d, 4" % sW)
    a("s_cbranch_scc1 LD_entry")

    st0 = a.nstamp
    a("s_lshl_b32 s%d, s%d, 15" % (sWB, sW))
    decode8()
    maskinfo()
    vTO, vQO, vCO = vTMP + 8, vTMP + 10, vTMP + 11
    a("v_lshlrev_b32 %s, 4, v1" % vr(vTO))
    a("s_lshl_b32 s%d, s%d, 11" % (sT0, sW))
    a("v_add_u32 %s, s%d, %s" % (vr(vTO), sT0, vr(vTO)))
    a("v_bfe_u32 %s, v1, 2, 3" % vr(t0))
    a("v_lshlrev_b32 %s, 2, %s" % (vr(vCO), vr(t0)))
    a("v_lshlrev_b32 %s, 13, %s" % (vr(vQO), vr(t0)))
    a("v_and_b32 %s, 3, v1" % vr(t1))
    a("v_lshl_add_u32 %s, %s, 8, %s" % (vr(vQO), vr(t1), vr(vQO)))
    a("v_lshrrev_b32 %s, 5, v1" % vr(t1))
    a("v_lshl_add_u32 %s, %s, 4, %s" % (vr(vQO), vr(t1), vr(vQO)))
    a("s_lshl_b32 s%d, s%d, 10" % (sT1, sG))
    a("v_add_u32 %s, s%d, %s" % (vr(vQO), sT1, vr(vQO)))
    a("v_and_b32 %s, 31, v1" % vr(t0))
    a("v_lshrrev_b32 %s, 5, v1" % vr(t1))
    a("v_lshlrev_b32 %s, 4, %s" % (vr(t0), vr(t0)))
    a("v_lshl_add_u32 %s, %s, 12, %s" % (vr(t0), vr(t1), vr(t0)))
    a("s_lshl_b32 s%d, s%d, 9" % (sT1, sW))
    a("v_add_u32 %s, s%d, %s" % (vr(vOOFF), sT1, vr(t0)))
    a("s_waitcnt lgkmcnt(0)")
    stamp()
    a("s_load_dwordx8 s[%d:%d], %s, 0" % (sC, sC + 7, sp(sCTX)))
    for s in range(8):
        a("global_load_dwordx4 %s, %s, %s offset:%d" % (vr(vQ + 4 * s, 4), vr(vQO), sp(sQ), s * 32))
    a("global_load_dword %s, %s, %s" % (vr(vCTXR), vr(vCO), sp(sCTX)))
    for r in range(2):
        a("global_load_dwordx4 %s, %s, %s offset:%d" % (vr(vT + 4 * r, 4), vr(vTO), sp(sBT), r * 1024))
    srd(SRDW, sWS, WS_SIZE)
    if OPT["prewarm"]:
        a.c("address-translation warm-up for the record area and the output")
        a("s_lshl_b32 s%d, s%d, 6" % (sT0, sG))
        a("s_add_u32 s%d, s%d, s%d" % (sT0, sT0, sI))
        a("s_lshl_b32 s%d, s%d, 15" % (sT1, sT0))
        a("s_add_u32 s%d, s%d, 0x%x" % (sT1, sT1, WS_O))
        a("s_lshl_b32 s%d, s%d, 9" % (sT2, sT0))
        a("buffer_load_dword %s, %s, %s, s%d offen" % (vr(vACO), vr(vZERO), sq(SRDW), sT1))
        a("buffer_load_dword %s, %s, %s, s%d offen" % (vr(vACO + 1), vr(vZERO), sq(SRDW), sT2))
        a("global_load_dword %s, %s, %s" % (vr(vACO + 2), vr(vZERO), sp(sOUT)))
    a.c("nonce: workgroup 0 / wave 0 publishes a per-launch tag in d_debug")
    a("s_or_b32 s%d, s2, s%d" % (sT0, sW))
    a("s_cmp_lg_u32 s%d, 0" % sT0)
    a("s_cbranch_scc1 L_nononce")
    a("s_memrealtime %s" % sp(96))
    a("s_waitcnt lgkmcnt(0)")
    a("s_or_b32 s96, s96, 1")
    a("v_mov_b32 %s, s96" % vr(t0))
    a("v_mov_b32 %s, s97" % vr(t1))
    a("s_mov_b64 exec, 1")
    a("global_store_dwordx2 %s, %s, %s sc1" % (vr(vZERO), vr(t0, 2), sp(sDBG)))
    a("s_mov_b64 exec, -1")
    a.lab("L_nononce")
    a.c("remaining lane constants")
    a("v_and_b32 %s, 31, v1" % vr(t0))
    a("v_lshrrev_b32 %s, 5, v1" % vr(t1))
    a("v_and_b32 %s, 3, v1" % vr(t2))
    a("v_bfe_u32 %s, v1, 2, 2" % vr(vTMP + 6))
    a("v_lshl_or_b32 %s, %s, 2, %s" % (vr(t2), vr(t2), vr(vTMP + 6)))
    a("v_xor_b32 %s, %s, %s" % (vr(t2), vr(t2), vr(t1)))
    a("v_lshlrev_b32 %s, 4, %s" % (vr(t2), vr(t2)))
    a("v_lshl_add_u32 %s, %s, 8, %s" % (vr(t2), vr(t0), vr(t2)))
    a("v_add_u32 %s, s%d, %s" % (vr(vKA), sWB, vr(t2)))
    for s in range(1, 8):
        a("v_xor_b32 %s, %d, %s" % (vr(vKA + s), s << 5, vr(vKA)))
    u0, u1, u2, u3, u4, u5 = (vLIM + k for k in range(6))
    a("v_bfe_u32 %s, v1, 2, 2" % vr(u0))
    a("v_lshrrev_b32 %s, 5, v1" % vr(u1))
    a("v_bfe_u32 %s, v1, 4, 1" % vr(u2))
    a("v_bfe_u32 %s, v1, 1, 1" % vr(u3))
    a("v_lshl_or_b32 %s, %s, 1, %s" % (vr(u2), vr(u2), vr(u3)))
    a("s_lshl_b32 s%d, s%d, 2" % (sT1, sW))
    a("v_or_b32 %s, s%d, %s" % (vr(u2), sT1, vr(u2)))
    for u in range(2):
        a("v_lshl_or_b32 %s, %s, 2, %s" % (vr(u3), vr(u0), vr(u1)))
        if u:
            a("v_or_b32 %s, 2, %s" % (vr(u3), vr(u3)))
        a("v_xor_b32 %s, %s, %s" % (vr(u3), vr(u3), vr(u2)))
        a("v_lshlrev_b32 %s, 4, %s" % (vr(u3), vr(u3)))
        a("v_lshl_add_u32 %s, %s, 2, %s" % (vr(u4), vr(u1), vr(u0)))
        a("v_add_u32 %s, %d, %s" % (vr(u4), 8 * u, vr(u4)))
        a("v_lshl_add_u32 %s, %s, 8, %s" % (vr(u3), vr(u4), vr(u3)))
        a("v_and_b32 %s, 1, v1" % vr(u5))
        a("v_lshl_add_u32 %s, %s, 3, %s" % (vr(vVA + u), vr(u5), vr(u3)))
        a("v_add_u32 %s, 0x10000, %s" % (vr(vVA + 2 + u), vr(vVA + u)))
    a("v_lshlrev_b32 %s, 4, v1" % vr(u0))
    a("v_add_u32 %s, 0x20000, %s" % (vr(vPR), vr(u0)))
    a("s_lshl_b32 s%d, s%d, 13" % (sT1, sW))
    a("v_add_u32 %s, s%d, %s" % (vr(vPW), sT1, vr(vPR)))
    a("v_mov_b32 %s, 0xff800000" % vr(vNINF))
    for k in range(4):
        a("v_mov_b32 %s, 0x3f803f80" % vr(vONE + k))
    a.c("verify the prediction: lengths (scalar) and table rows 2w, 2w+1")
    a("s_waitcnt lgkmcnt(0)")
    a("s_mov_b32 s%d, 0" % sBAD)
    for b in range(8):
        a("s_cmp_lg_u32 s%d, %d" % (sC + b, PRED_CTX[b]))
        a("s_cselect_b32 s%d, 1, s%d" % (sBAD, sBAD))
    a("s_waitcnt vmcnt(%d)" % (3 if OPT["prewarm"] else 0))
    a("v_lshrrev_b32 %s, 5, v1" % vr(u0))
    a("v_lshlrev_b32 %s, 7, %s" % (vr(u0), vr(u0)))
    a("v_lshlrev_b32 %s, 2, v1" % vr(u1))
    a("s_lshl_b32 s%d, s%d, 1" % (sT0, sW))
    a("v_mov_b32 %s, 0" % vr(u3))
    for r in range(2):
        a("v_mad_u32_u24 %s, %s, s%d, %s" % (vr(u2), vr(u0), sT0, vr(u1)))
        for c in range(4):
            a("v_add_u32 %s, %d, %s" % (vr(u4), c, vr(u2)))
            a("v_sad_u32 %s, %s, %s, %s" % (vr(u3), vr(vT + 4 * r + c), vr(u4), vr(u3)))
        a("s_add_u32 s%d, s%d, 1" % (sT0, sT0))
    a("v_cmp_ne_u32 vcc, 0, %s" % vr(u3))
    a("s_nop 3")
    a("s_cmp_lg_u64 vcc, 0")
    a("s_cselect_b32 s%d, 1, s%d" % (sBAD, sBAD))
    a("s_branch C_body")

    a.lab("C_generic")
    partition()
    a.lab("C_round")
    decode8()
    maskinfo()

    a.lab("C_body")
    a("v_cmp_gt_i32 vcc, 1, %s" % vr(vCTXR))
    a("v_mov_b32 %s, 0x1000" % vr(t0))
    a("v_min_i32 %s, 0x1000, %s" % (vr(t1), vr(vCTXR)))
    a("v_cndmask_b32 %s, %s, %s, vcc" % (vr(t1), vr(t1), vr(t0)))
    a("v_lshrrev_b32 %s, 5, v1" % vr(t2))
    a("v_lshlrev_b32 %s, 2, %s" % (vr(t2), vr(t2)))
    a("v_sub_u32 %s, %s, %s" % (vr(vCTXH), vr(t1), vr(t2)))
    for u in range(8):
        a("v_readlane_b32 s%d, %s, %d" % (sJ16 + u, vr(vJ), u))
        a("v_readlane_b32 s%d, %s, %d" % (sMK + 2 * u, vr(vM32), u))
        a("v_readlane_b32 s%d, %s, %d" % (sMK + 2 * u + 1, vr(vM32), u))
    a("s_nop 1")
    for u in range(8):
        a("v_cndmask_b32 %s, 0, %s, %s" % (vr(vLIM + u), vr(vCTXH), sp(sMK + 2 * u)))
    for u in range(8):
        a("v_subrev_u32 %s, s%d, %s" % (vr(vLIM + u), sJ16 + u, vr(vLIM + u)))
    a.c("zero Q of empty-context batches (uniform softmax over all positions)")
    a("v_cmp_lt_i32 vcc, 0, %s" % vr(vCTXR))
    a("s_nop 1")
    for k in range(32):
        a("v_cndmask_b32 %s, 0, %s, vcc" % (vr(vQ + k), vr(vQ + k)))
    a("v_mov_b32 %s, %s" % (vr(vMAX), vr(vNINF)))
    a.c("relevance mask of the 8 batches for this chunk, record bases")
    sU0, sU1, sREL, sOB, sMB = sSOFF, sSOFF + 1, sSOFF + 2, sSOFF + 3, sSOFF + 4
    a("s_lshl_b32 s%d, s%d, 2" % (sT0, sCH))
    a("s_mul_i32 s%d, s%d, s%d" % (sU0, sT0, sU))
    a("s_lshl2_add_u32 s%d, s%d, s%d" % (sU1, sU, sU0))
    a("s_lshr_b32 s%d, s%d, s%d" % (sU0, sU0, sSH))
    a("s_lshr_b32 s%d, s%d, s%d" % (sU1, sU1, sSH))
    a("s_mov_b32 s%d, 0" % sREL)
    for b in range(8):
        a("s_cmp_lt_u32 s%d, s%d" % (sU0, sB + b + 1))
        a("s_cselect_b32 s%d, %d, 0" % (sT0, 1 << b))
        a("s_cmp_gt_u32 s%d, s%d" % (sU1, sB + b))
        a("s_cselect_b32 s%d, s%d, 0" % (sT0, sT0))
        a("s_or_b32 s%d, s%d, s%d" % (sREL, sREL, sT0))
    a("s_cmp_lt_u32 s%d, s%d" % (sU0, sS))
    a("s_cselect_b32 s%d, 0xff, s%d" % (sREL, sREL))
    a("s_lshl_b32 s%d, s%d, 6" % (sT0, sG))
    a("s_add_u32 s%d, s%d, s%d" % (sT0, sT0, sCH))
    a("s_lshl_b32 s%d, s%d, 15" % (sOB, sT0))
    a("s_add_u32 s%d, s%d, 0x%x" % (sOB, sOB, WS_O))
    a("s_lshl_b32 s%d, s%d, 9" % (sMB, sT0))

    a.c("S phase")
    for t in range(4):
        a("s_barrier")
        stamp()
        for s in range(8):
            a("ds_read_b128 %s, %s offset:%d" % (vr(vKF + 4 * s, 4), vr(vKA + s), t * 8192))
        for s in range(8):
            a("s_waitcnt lgkmcnt(%d)" % (7 - s))
            a("v_mfma_f32_32x32x16_bf16 %s, %s, %s, %s" % (
                vr(vS + 16 * t, 16), vr(vKF + 4 * s, 4), vr(vQ + 4 * s, 4),
                "0" if s == 0 else vr(vS + 16 * t, 16)))
        if t == 3:
            a("global_load_dwordx2 %s, %s, %s sc1" % (vr(vNON, 2), vr(vZERO), sp(sDBG)))
        a("s_nop 3")
        for half in range(2):
            u = 2 * t + half
            for r8 in range(8):
                const = 8 * ((r8 >> 2) & 1) + (r8 & 3)
                a("v_cmp_lt_i32 %s, %d, %s" % (sp(sMK + 2 * r8), const, vr(vLIM + u)))
            for r8 in range(8):
                r = vS + 16 * t + 8 * half + r8
                a("v_cndmask_b32 %s, %s, %s, %s" % (vr(r), vr(vNINF), vr(r), sp(sMK + 2 * r8)))
            for r8 in range(0, 8, 2):
                r = vS + 16 * t + 8 * half + r8
                a("v_max3_f32 %s, %s, %s, %s" % (vr(vMAX), vr(vMAX), vr(r), vr(r + 1)))
    a.c("max exchange: every wave writes {max[32], flag[32]} into the P area of every compute wave")
    a("v_mov_b32 %s, %s" % (vr(t0), vr(vMAX)))
    a("s_nop 1")
    a("v_permlane32_swap_b32 %s, %s" % (vr(vMAX), vr(t0)))
    a("v_mov_b32 %s, s%d" % (vr(t1), sBAD))
    a("v_cmp_gt_u32 vcc, 32, v1")
    a("v_max_f32 %s, %s, %s" % (vr(vMAX), vr(vMAX), vr(t0)))
    a("v_lshlrev_b32 %s, 2, v1" % vr(t2))
    a("v_cndmask_b32 %s, %s, %s, vcc" % (vr(t3), vr(t1), vr(vMAX)))
    a("s_lshl_b32 s%d, s%d, 8" % (sT0, sW))
    a("s_add_u32 s%d, s%d, 0x20000" % (sT0, sT0))
    a("v_add_u32 %s, s%d, %s" % (vr(t2), sT0, vr(t2)))
    for w in range(4):
        a("ds_write_b32 %s, %s offset:%d" % (vr(t2), vr(t3), w * 8192))
    a("s_add_u32 s%d, s%d, %d" % (sT0, sWB, 3 * 8192))
    a("v_mov_b32 %s, s%d" % (vr(t2), sT0))
    a("ds_write_b32 %s, %s" % (vr(t2), vr(t1)))
    a("v_and_b32 %s, 31, v1" % vr(t3))
    a("v_lshlrev_b32 %s, 2, %s" % (vr(t3), vr(t3)))
    a("s_lshl_b32 s%d, s%d, 13" % (sT0, sW))
    a("s_add_u32 s%d, s%d, 0x20000" % (sT0, sT0))
    a("v_add_u32 %s, s%d, %s" % (vr(t3), sT0, vr(t3)))
    a("s_waitcnt lgkmcnt(0)")
    a("s_barrier")
    stamp()
    X = vKF
    for w in range(4):
        a("ds_read2_b32 %s, %s offset0:%d offset1:%d" % (vr(X + 2 * w, 2), vr(t3), w * 64, w * 64 + 32))
    a("s_waitcnt lgkmcnt(0)")
    a("v_or3_b32 %s, %s, %s, %s" % (vr(t0), vr(X + 1), vr(X + 3), vr(X + 5)))
    a("v_or_b32 %s, %s, %s" % (vr(t0), vr(t0), vr(X + 7)))
    a("v_max3_f32 %s, %s, %s, %s" % (vr(vMAX), vr(X), vr(X + 2), vr(X + 4)))
    a("v_readfirstlane_b32 s%d, %s" % (sT0, vr(t0)))
    a("v_mov_b32 %s, %s" % (vr(t0), f32hex(-1e30)))
    a("v_max3_f32 %s, %s, %s, %s" % (vr(vMAX), vr(vMAX), vr(X + 6), vr(t0)))
    a("s_nop 1")
    a("s_cmp_lg_u32 s%d, 0" % sT0)
    a("s_cbranch_scc1 C_fallback")
    a("s_mov_b32 s%d, %s" % (sT0, f32hex(SCALE_LOG2)))
    a("v_mul_f32 %s, %s, %s" % (vr(vNMC), f32hex(-SCALE_LOG2), vr(vMAX)))
    a.c("P phase")
    for u in range(8):
        base = vS + 8 * u
        for k in range(8):
            a("v_fma_f32 %s, %s, s%d, %s" % (vr(base + k), vr(base + k), sT0, vr(vNMC)))
        for k in range(8):
            a("v_exp_f32 %s, %s" % (vr(base + k), vr(base + k)))
        pk = vTMP + 4 * (u & 1)
        for k in range(4):
            a("v_cvt_pk_bf16_f32 %s, %s, %s" % (vr(pk + k), vr(base + 2 * k), vr(base + 2 * k + 1)))
        a("ds_write_b128 %s, %s offset:%d" % (vr(vPW), vr(pk, 4), u * 1024))
    GA, GB = vTMP, vTMP + 4
    a("s_waitcnt vmcnt(0)")
    nonce_wait("C")
    a("s_waitcnt lgkmcnt(0)")
    for q in (GA, GB):
        a("v_mov_b32 %s, s%d" % (vr(q + 2), sNONCE))
        a("v_mov_b32 %s, s%d" % (vr(q + 3), sNONCE + 1))
    a("s_barrier")
    stamp()
    a.c("PV phase")
    for t in range(4):
        for w in range(4):
            for s in range(2):
                a("ds_read_b128 %s, %s offset:%d" % (vr(vKF + 4 * (2 * w + s), 4), vr(vPR), (w * 8 + 2 * t + s) * 1024))
        for k in range(8):
            a("s_waitcnt lgkmcnt(%d)" % (7 - k))
            a("v_mfma_f32_32x32x16_bf16 %s, %s, %s, %s" % (
                vr(vACL, 16), vr(vONE, 4), vr(vKF + 4 * k, 4),
                "0" if (t == 0 and k == 0) else vr(vACL, 16)))
        if t == 3:
            a("s_cmp_lg_u32 s%d, 0" % sW)
            a("s_cbranch_scc1 L_noml")
            a("v_bfe_u32 %s, v1, 2, 3" % vr(t4 + 4))
            a("v_lshrrev_b32_e64 %s, %s, s%d" % (vr(t4 + 5), vr(t4 + 4), sREL))
            a("v_and_b32 %s, 1, %s" % (vr(t4 + 5), vr(t4 + 5)))
            a("v_cmp_eq_u32 vcc, 1, %s" % vr(t4 + 5))
            a("v_and_b32 %s, 31, v1" % vr(t4 + 4))
            a("v_lshlrev_b32 %s, 4, %s" % (vr(t4 + 4), vr(t4 + 4)))
            a("v_mov_b32 %s, %s" % (vr(GA), vr(vMAX)))
            a("s_nop 5")
            a("v_mov_b32 %s, %s" % (vr(GA + 1), vr(vACL)))
            a("s_and_b32 exec_lo, vcc_lo, -1")
            a("s_mov_b32 exec_hi, 0")
            a("s_cbranch_execz L_noml2")
            a("buffer_store_dwordx4 %s, %s, %s, s%d offen sc1" % (vr(GA, 4), vr(t4 + 4), sq(SRDW), sMB))
            a.lab("L_noml2")
            a("s_mov_b64 exec, -1")
            a.lab("L_noml")
        if t >= 2:
            a("s_barrier")
            stamp()
        for w in range(4):
            for s in range(2):
                k = 2 * w + s
                for u in range(2):
                    a("ds_read_b64_tr_b16 %s, %s offset:%d" % (
                        vr(vVF + 4 * k + 2 * u, 2), vr(vVA + 2 * (w >> 1) + u),
                        (w & 1) * 32768 + t * 8192 + s * 4096))
        for k in range(8):
            a("s_waitcnt lgkmcnt(%d)" % (14 - 2 * k))
            a("v_mfma_f32_32x32x16_bf16 %s, %s, %s, %s" % (
                vr(vACO, 16), vr(vKF + 4 * k, 4), vr(vVF + 4 * k, 4),
                "0" if (t == 0 and k == 0) else vr(vACO, 16)))
    a("s_nop 8")
    a.c("publish O")
    for gq in range(4):
        a("s_bfe_i32 exec_lo, s%d, 0x%x" % (sREL, 0x10000 | (2 * gq)))
        a("s_bfe_i32 exec_hi, s%d, 0x%x" % (sREL, 0x10000 | (2 * gq + 1)))
        a("s_add_u32 s%d, s%d, %d" % (sT2, sOB, gq * 8192))
        a("s_cbranch_execz L_skipo%d" % gq)
        a("v_mov_b32 %s, %s" % (vr(GA), vr(vACO + 4 * gq)))
        a("v_mov_b32 %s, %s" % (vr(GA + 1), vr(vACO + 4 * gq + 1)))
        a("v_mov_b32 %s, %s" % (vr(GB), vr(vACO + 4 * gq + 2)))
        a("v_mov_b32 %s, %s" % (vr(GB + 1), vr(vACO + 4 * gq + 3)))
        a("buffer_store_dwordx4 %s, %s, %s, s%d offen sc1" % (vr(GA, 4), vr(vOOFF), sq(SRDW), sT2))
        a("buffer_store_dwordx4 %s, %s, %s, s%d offen offset:2048 sc1" % (vr(GB, 4), vr(vOOFF), sq(SRDW), sT2))
        a("s_nop 1")
        a.lab("L_skipo%d" % gq)
    a("s_mov_b64 exec, -1")
    stamp()
    a("s_add_u32 s%d, s%d, 1" % (sR, sR))
    a("s_cmp_ge_u32 s%d, s%d" % (sR, sNR))
    if OPT["stamps"]:
        a("s_cbranch_scc1 C_stampout")
    else:
        a("s_cbranch_scc1 L_end")
    a("s_waitcnt vmcnt(0)")
    a("s_barrier")
    a("s_branch C_round")
    a.lab("C_fallback")
    a("s_waitcnt vmcnt(0) lgkmcnt(0)")
    a("s_barrier")
    a("s_branch C_generic")
    if OPT["stamps"]:
        a.lab("C_stampout")
        stampout(5)

    a.lab("LD_entry")
    a.nstamp = st0
    a("v_lshrrev_b32 %s, 4, v1" % vr(t0))
    a("v_and_b32 %s, 15, v1" % vr(t1))
    a("s_lshl_b32 s%d, s%d, 8" % (sT0, sG))
    for p in range(4):
        a("v_lshl_or_b32 %s, %s, 2, %d" % (vr(t2), vr(t0), p))
        a("v_xor_b32 %s, %s, %s" % (vr(t2), vr(t2), vr(t1)))
        a("v_lshlrev_b32 %s, 4, %s" % (vr(t2), vr(t2)))
        a("v_lshl_add_u32 %s, %s, 11, %s" % (vr(t2), vr(t0), vr(t2)))
        a("v_add_u32 %s, %d, %s" % (vr(t2), p * 8192 - 1024 * p, vr(t2)))
        a("v_add_u32 %s, s%d, %s" % (vr(vVOFF + p), sT0, vr(t2)))
    decode32()
    a("v_lshrrev_b32 %s, 8, %s" % (vr(t0), vr(vTT)))
    a("v_and_b32 %s, 0xff, %s" % (vr(vID), vr(vTT)))
    a("v_lshl_add_u32 %s, %s, 7, %s" % (vr(vID), vr(t0), vr(vID)))
    ids_to_soff()
    a("s_waitcnt lgkmcnt(0)")
    stamp()
    srd(SRDK, sK, KV_BYTES)
    srd(SRDV, sV, KV_BYTES)
    srd(SRDW, sWS, WS_SIZE)
    a("s_branch LD_issue")
    a.lab("LD_generic")
    partition()
    a.lab("LD_round")
    decode32()
    a("v_lshlrev_b32 %s, 2, %s" % (vr(t0), vr(vTT)))
    a("s_nop 0")
    a("v_cndmask_b32 %s, 0, %s, vcc" % (vr(t0), vr(t0)))
    a("global_load_dword %s, %s, %s" % (vr(vID), vr(t0), sp(sBT)))
    a("s_waitcnt vmcnt(0)")
    ids_to_soff()
    a("s_nop 1")
    a.lab("LD_issue")

    def rnd(r):
        srdx = SRDK if r < 4 else SRDV
        rr = r & 3
        base = sSOFF if (r & 1) == 0 else sJ16
        for wv in range(4):
            for s in range(2):
                a("v_readlane_b32 s%d, %s, %d" % (base + 2 * wv + s, vr(vID), 8 * wv + 2 * rr + s))
        for wv in range(4):
            for s in range(2):
                a("s_mov_b32 m0, %d" % (wv * 32768 + (2 * rr + s) * 4096))
                a("s_nop 0")
                for p in range(4):
                    a("buffer_load_dwordx4 %s, %s, s%d offen offset:%d%s lds" % (
                        vr(vVOFF + p), sq(srdx), base + 2 * wv + s, 1024 * p, NT))

    rnd(0)
    rnd(1)
    rnd(2)
    a("s_waitcnt vmcnt(62)")
    stamp()
    a("s_barrier")
    rnd(3)
    a("s_waitcnt vmcnt(62)")
    stamp()
    a("s_barrier")
    rnd(4)
    a("s_waitcnt vmcnt(62)")
    stamp()
    a("s_barrier")
    rnd(5)
    a("s_waitcnt vmcnt(62)")
    stamp()
    a("s_barrier")
    rnd(6)
    stamp()
    a("s_barrier")
    a("v_mov_b32 %s, %d" % (vr(t0), 3 * 8192))
    a("v_mov_b32 %s, %d" % (vr(t1), 3 * 8192 + 65536))
    a("ds_read_b32 %s, %s" % (vr(t2), vr(t0)))
    a("ds_read_b32 %s, %s offset:32768" % (vr(t3), vr(t0)))
    a("ds_read_b32 %s, %s" % (vr(t4), vr(t1)))
    a("ds_read_b32 %s, %s offset:32768" % (vr(t5), vr(t1)))
    a("s_waitcnt lgkmcnt(0)")
    a("v_or3_b32 %s, %s, %s, %s" % (vr(t2), vr(t2), vr(t3), vr(t4)))
    a("v_or_b32 %s, %s, %s" % (vr(t2), vr(t2), vr(t5)))
    a("s_nop 0")
    a("v_readfirstlane_b32 s%d, %s" % (sT0, vr(t2)))
    a("s_nop 1")
    a("s_cmp_lg_u32 s%d, 0" % sT0)
    a("s_cbranch_scc1 LD_fallback")
    rnd(7)
    a("global_load_dwordx2 %s, %s, %s sc1" % (vr(vNON, 2), vr(vZERO), sp(sDBG)))
    a("s_waitcnt vmcnt(62)")
    stamp()
    a("s_barrier")
    sBt, sQD, sN1, sA2, sN, sKK, sB0, sB1, sGB, sSPIN, sCNT = 64, 65, 66, 67, 68, 69, 70, 71, 72, 73, 74
    sM = 76
    sREC = 80
    SRDO = 20
    vCST, vOO, vMO = 6, 7, 8
    vMR, vLA, vOA, vNM, vSC, vRL = 10, 12, 14, 16, 18, 20
    vA0, vA1 = 22, 23
    vDAT = 64
    a("s_lshr_b32 s%d, s%d, 2" % (sBt, sI))
    a("s_and_b32 s%d, s%d, 3" % (sQD, sI))
    a("s_mov_b32 s%d, s%d" % (sB0, sB))
    a("s_mov_b32 s%d, s%d" % (sB1, sB + 1))
    for b in range(1, 8):
        a("s_cmp_eq_u32 s%d, %d" % (sBt, b))
        a("s_cselect_b32 s%d, s%d, s%d" % (sB0, sB + b, sB0))
        a("s_cselect_b32 s%d, s%d, s%d" % (sB1, sB + b + 1, sB1))
    a("v_lshlrev_b32 %s, 2, v1" % vr(vCST))
    a("v_mul_lo_u32 %s, %s, s%d" % (vr(vCST), vr(vCST), sU))
    a("v_lshrrev_b32 %s, s%d, %s" % (vr(vCST), sSH, vr(vCST)))
    a("s_sub_u32 s%d, s%d, 2" % (sT0, sSH))
    a("s_lshl_b32 s%d, 1, s%d" % (sT0, sT0))
    a("v_cmp_gt_u32 %s, s%d, v1" % (sp(sM), sT0))
    a("v_cmp_gt_u32 vcc, s%d, %s" % (sS, vr(vCST)))
    a("s_and_b64 vcc, vcc, %s" % sp(sM))
    a("s_bcnt1_i32_b64 s%d, vcc" % sN1)
    a("v_cmp_ge_u32 vcc, s%d, %s" % (sB0, vr(vCST)))
    a("s_and_b64 vcc, vcc, %s" % sp(sM))
    a("s_bcnt1_i32_b64 s%d, vcc" % sA2)
    a("s_sub_u32 s%d, s%d, 1" % (sA2, sA2))
    a("s_max_u32 s%d, s%d, s%d" % (sA2, sA2, sN1))
    a("v_cmp_gt_u32 vcc, s%d, %s" % (sB1, vr(vCST)))
    a("s_and_b64 vcc, vcc, %s" % sp(sM))
    a("s_bcnt1_i32_b64 s%d, vcc" % sT1)
    a("s_sub_i32 s%d, s%d, s%d" % (sT1, sT1, sA2))
    a("s_max_i32 s%d, s%d, 0" % (sT1, sT1))
    a("s_cmp_gt_u32 s%d, s%d" % (sB1, sB0))
    a("s_cselect_b32 s%d, s%d, 0" % (sT1, sT1))
    a("s_add_u32 s%d, s%d, s%d" % (sN, sN1, sT1))
    a("s_sub_u32 s%d, s%d, s%d" % (sA2, sA2, sN1))
    a("s_lshl_b32 s%d, s%d, 6" % (sGB, sG))
    a("v_and_b32 %s, 31, v1" % vr(vA0))
    a("v_lshrrev_b32 %s, 5, v1" % vr(vA1))
    a("v_lshlrev_b32 %s, 4, %s" % (vr(vOO), vr(vA0)))
    a("v_lshl_add_u32 %s, %s, 11, %s" % (vr(vOO), vr(vA1), vr(vOO)))
    a("s_lshl_b32 s%d, s%d, 9" % (sT0, sQD))
    a("s_lshl_b32 s%d, s%d, 12" % (sT1, sBt))
    a("s_add_u32 s%d, s%d, s%d" % (sT0, sT0, sT1))
    a("s_add_u32 s%d, s%d, 0x%x" % (sT0, sT0, WS_O))
    a("v_add_u32 %s, s%d, %s" % (vr(vOO), sT0, vr(vOO)))
    a("v_lshlrev_b32 %s, 5, %s" % (vr(vMO), vr(vA1)))
    a("s_lshl_b32 s%d, s%d, 6" % (sT0, sBt))
    a("v_add_u32 %s, s%d, %s" % (vr(vMO), sT0, vr(vMO)))
    for k in range(2):
        a("v_mov_b32 %s, %s" % (vr(vMR + k), f32hex(-1e30)))
        a("v_mov_b32 %s, 0" % vr(vLA + k))
        a("v_mov_b32 %s, 0" % vr(vOA + k))
    a("s_mov_b32 s%d, 0" % sKK)

    def recs():
        a("s_sub_u32 s%d, s%d, s%d" % (sCNT, sN, sKK))
        for p in range(NSLOT):
            a("s_add_u32 s%d, s%d, %d" % (sT0, sKK, p))
            a("s_cmp_gt_u32 s%d, %d" % (sCNT, p))
            a("s_cselect_b32 s%d, s%d, s%d" % (sT0, sT0, sKK))
            a("s_add_u32 s%d, s%d, s%d" % (sT1, sT0, sA2))
            a("s_cmp_lt_u32 s%d, s%d" % (sT0, sN1))
            a("s_cselect_b32 s%d, s%d, s%d" % (sT0, sT0, sT1))
            a("s_add_u32 s%d, s%d, s%d" % (sT0, sT0, sGB))
            a("s_lshl_b32 s%d, s%d, 9" % (sREC + p, sT0))
    recs()
    a("v_lshlrev_b32 %s, 9, %s" % (vr(vA1), vr(vA1)))
    a("v_lshl_add_u32 %s, %s, 1, %s" % (vr(vA1), vr(vA0), vr(vA1)))
    a("s_waitcnt vmcnt(33)")
    stamp()
    a("s_barrier")
    a("s_waitcnt vmcnt(0)")
    stamp()
    a("s_barrier")
    a("s_add_u32 s%d, s%d, 1" % (sR, sR))
    a("s_cmp_ge_u32 s%d, s%d" % (sR, sNR))
    a("s_cbranch_scc1 LD_combine")
    a("s_barrier")
    a("s_branch LD_round")
    a.lab("LD_fallback")
    a("s_waitcnt vmcnt(0) lgkmcnt(0)")
    a("s_barrier")
    a("s_branch LD_generic")

    a.lab("LD_combine")
    nonce_wait("L")
    a("s_mov_b32 s%d, %s" % (sT3, f32hex(SCALE_LOG2)))
    a.lab("L_cbatch")
    a("s_mov_b32 s%d, 0" % sSPIN)
    a.lab("L_pollml")
    for p in range(NSLOT):
        d = vDAT + 12 * p
        a("buffer_load_dwordx4 %s, %s, %s, s%d offen sc1" % (vr(d + 4, 4), vr(vMO), sq(SRDW), sREC + p))
        a("buffer_load_dwordx4 %s, %s, %s, s%d offen offset:16 sc1" % (vr(d + 8, 4), vr(vMO), sq(SRDW), sREC + p))
    a("s_waitcnt vmcnt(0)")
    for p in range(NSLOT):
        d = vDAT + 12 * p
        a("v_cmp_eq_u64 %s, %s, %s" % ("vcc" if p == 0 else sp(sM), sp(sNONCE), vr(d + 6, 2)))
        if p:
            a("s_and_b64 vcc, vcc, %s" % sp(sM))
        a("v_cmp_eq_u64 %s, %s, %s" % (sp(sM), sp(sNONCE), vr(d + 10, 2)))
        a("s_and_b64 vcc, vcc, %s" % sp(sM))
    a("s_cmp_eq_u64 vcc, -1")
    a("s_cbranch_scc1 L_mlok")
    a("s_add_u32 s%d, s%d, 1" % (sSPIN, sSPIN))
    a("s_cmp_gt_u32 s%d, 0x40000" % sSPIN)
    a("s_cbranch_scc1 L_end")
    a("s_branch L_pollml")
    a.lab("L_mlok")
    for p in range(NSLOT):
        d = vDAT + 12 * p
        a("s_lshl_b32 s%d, s%d, 6" % (sT0, sREC + p))
        a("buffer_load_dwordx4 %s, %s, %s, s%d offen sc1" % (vr(d, 4), vr(vOO), sq(SRDW), sT0))
    stamp()
    for p in range(NSLOT - 1, 0, -1):
        d = vDAT + 12 * p
        a("s_cmp_gt_u32 s%d, %d" % (sCNT, p))
        a("s_cbranch_scc1 L_neutral_done")
        a("v_mov_b32 %s, %s" % (vr(d + 4), f32hex(-1e30)))
        a("v_mov_b32 %s, %s" % (vr(d + 8), f32hex(-1e30)))
        a("v_mov_b32 %s, 0" % vr(d + 5))
        a("v_mov_b32 %s, 0" % vr(d + 9))
    a.lab("L_neutral_done")
    for k in range(2):
        a("v_mov_b32 %s, %s" % (vr(vNM + k), vr(vMR + k)))
    for p in range(0, NSLOT, 2):
        for k in range(2):
            a("v_max3_f32 %s, %s, %s, %s" % (vr(vNM + k), vr(vNM + k), vr(vDAT + 12 * p + 4 + 4 * k),
                                            vr(vDAT + 12 * (p + 1) + 4 + 4 * k)))
    for k in range(2):
        a("v_mul_f32 %s, %s, %s" % (vr(vRL + k), f32hex(-SCALE_LOG2), vr(vNM + k)))
    for k in range(2):
        a("v_fma_f32 %s, %s, s%d, %s" % (vr(vSC + k), vr(vMR + k), sT3, vr(vRL + k)))
    for p in range(NSLOT):
        d = vDAT + 12 * p
        for k in range(2):
            a("v_fma_f32 %s, %s, s%d, %s" % (vr(d + 4 + 4 * k), vr(d + 4 + 4 * k), sT3, vr(vRL + k)))
    for k in range(2):
        a("v_exp_f32 %s, %s" % (vr(vSC + k), vr(vSC + k)))
    for p in range(NSLOT):
        d = vDAT + 12 * p
        for k in range(2):
            a("v_exp_f32 %s, %s" % (vr(d + 4 + 4 * k), vr(d + 4 + 4 * k)))
    for k in range(2):
        a("v_mul_f32 %s, %s, %s" % (vr(vLA + k), vr(vLA + k), vr(vSC + k)))
        a("v_mul_f32 %s, %s, %s" % (vr(vOA + k), vr(vOA + k), vr(vSC + k)))
        a("v_mov_b32 %s, %s" % (vr(vMR + k), vr(vNM + k)))
    for p in range(NSLOT):
        d = vDAT + 12 * p
        for k in range(2):
            a("v_fma_f32 %s, %s, %s, %s" % (vr(vLA + k), vr(d + 4 + 4 * k), vr(d + 5 + 4 * k), vr(vLA + k)))
    for k in range(2):
        a("v_rcp_f32 %s, %s" % (vr(vRL + k), vr(vLA + k)))
    a("s_mov_b32 s%d, s%d" % (SRDO, sOUT))
    a("s_and_b32 s%d, s%d, 0xffff" % (SRDO + 1, sOUT + 1))
    a("s_mov_b32 s%d, 0x10000" % (SRDO + 2))
    a("s_mov_b32 s%d, 0x20000" % (SRDO + 3))
    a("s_lshl_b32 s%d, s%d, 13" % (sB0, sBt))
    a("s_lshl_b32 s%d, s%d, 10" % (sT1, sG))
    a("s_add_u32 s%d, s%d, s%d" % (sB0, sB0, sT1))
    a("s_lshl_b32 s%d, s%d, 6" % (sT1, sQD))
    a("s_add_u32 s%d, s%d, s%d" % (sB0, sB0, sT1))
    a("s_mov_b32 s%d, 0" % sSPIN)
    a.lab("L_pollo")
    a("s_waitcnt vmcnt(0)")
    for p in range(NSLOT):
        d = vDAT + 12 * p
        a("v_cmp_eq_u64 %s, %s, %s" % ("vcc" if p == 0 else sp(sM), sp(sNONCE), vr(d + 2, 2)))
        if p:
            a("s_and_b64 vcc, vcc, %s" % sp(sM))
    a("s_cmp_eq_u64 vcc, -1")
    a("s_cbranch_scc1 L_ook")
    a("s_add_u32 s%d, s%d, 1" % (sSPIN, sSPIN))
    a("s_cmp_gt_u32 s%d, 0x40000" % sSPIN)
    a("s_cbranch_scc1 L_end")
    for p in range(NSLOT):
        d = vDAT + 12 * p
        a("s_lshl_b32 s%d, s%d, 6" % (sT0, sREC + p))
        a("buffer_load_dwordx4 %s, %s, %s, s%d offen sc1" % (vr(d, 4), vr(vOO), sq(SRDW), sT0))
    a("s_branch L_pollo")
    a.lab("L_ook")
    stamp()
    vO2 = vSC
    for k in range(2):
        a("v_mul_f32 %s, %s, %s" % (vr(vO2 + k), vr(vDAT + 12 + 4 + 4 * k), vr(vDAT + 12 + k)))
    for p in range(NSLOT):
        if p == 1:
            continue
        d = vDAT + 12 * p
        acc = vOA if (p & 1) == 0 else vO2
        for k in range(2):
            a("v_fma_f32 %s, %s, %s, %s" % (vr(acc + k), vr(d + 4 + 4 * k), vr(d + k), vr(acc + k)))
    for k in range(2):
        a("v_add_f32 %s, %s, %s" % (vr(vOA + k), vr(vOA + k), vr(vO2 + k)))
    a("s_add_u32 s%d, s%d, %d" % (sKK, sKK, NSLOT))
    a("s_cmp_lt_u32 s%d, s%d" % (sKK, sN))
    a("s_cbranch_scc0 L_final")
    recs()
    a("s_branch L_cbatch")
    a.lab("L_final")
    for k in range(2):
        a("v_mul_f32 %s, %s, %s" % (vr(vOA + k), vr(vOA + k), vr(vRL + k)))
    a("v_cvt_pk_bf16_f32 %s, %s, %s" % (vr(vOA), vr(vOA), vr(vOA + 1)))
    a("buffer_store_short %s, %s, %s, s%d offen" % (vr(vOA), vr(vA1), sq(SRDO), sB0))
    a("buffer_store_short_d16_hi %s, %s, %s, s%d offen offset:256" % (vr(vOA), vr(vA1), sq(SRDO), sB0))
    if OPT["stamps"]:
        a("s_waitcnt vmcnt(0)")
        stamp()
        stampout(5)
    a.lab("L_end")
    a("s_endpgm")


def build():
    a = A()
    kernel(a)
    s = HEADER
    s += "; @launch grid=(256,1,1) block=(320,1,1) lds=163840\n"
    s += '.amdgcn_target "amdgcn-amd-amdhsa--gfx950"\n.text\n'
    k = NAME + "_kernel"
    s += ".globl %s\n.p2align 8\n.type %s,@function\n" % (k, k) + a.text()
    s += """.section .rodata,"a"
.p2align 6
.amdhsa_kernel %s
  .amdhsa_next_free_vgpr 256
  .amdhsa_next_free_sgpr 102
  .amdhsa_accum_offset 256
  .amdhsa_group_segment_fixed_size 0
  .amdhsa_kernarg_size 64
  .amdhsa_user_sgpr_count 2
  .amdhsa_user_sgpr_kernarg_segment_ptr 1
  .amdhsa_system_sgpr_workgroup_id_x 1
.end_amdhsa_kernel
""" % k
    return s


if __name__ == "__main__":
    args = sys.argv[1:]
    for x in list(args):
        if x.startswith("--"):
            k = x[2:]
            if k.startswith("no"):
                OPT[k[2:]] = False
            else:
                OPT[k] = True
            args.remove(x)
    open(args[0] if args else "cdna_kernels/%s.s" % NAME, "w").write(build())
```

```python
import struct
import sys

NAME = "standalone__paged_block_table_kv_radixattention__sampling"

HEADER = """; Kernarg layout for this problem (64 bytes, ptrs only, base s[0:1]):
"""

NPHYS = 1152
KV_BYTES = NPHYS * 32768
WS_STAMP = 512 << 10
WS_O = 1 << 20
WS_ML = 17 << 20
WS_SIZE = 18 << 20
SCALE_LOG2 = 0.08838834764831845 * 1.4426950408889634
PRED_CTX = [4096 - (i * 2654435761) % 1024 for i in range(1, 9)]
PRED_S = 128
NSLOT = 12

OPT = dict(stamps=False, nt=True, prewarm=True)


def f32hex(x):
    return "0x%08x" % struct.unpack("<I", struct.pack("<f", x))[0]


class A:
    def __init__(self):
        self.l = []
        self.nstamp = 0

    def __call__(self, s):
        self.l.append("    " + s)

    def lab(self, s):
        self.l.append(s + ":")

    def c(self, s):
        self.l.append("    ; " + s)

    def text(self):
        return "\n".join(self.l) + "\n"


def vr(a, n=1):
    return "v%d" % a if n == 1 else "v[%d:%d]" % (a, a + n - 1)


def sp(a):
    return "s[%d:%d]" % (a, a + 1)


def sq(a):
    return "s[%d:%d]" % (a, a + 3)


def kernel(a):
    sMODE = 3
    sQ, sK, sV, sBT, sCTX, sOUT, sDBG, sWS = 4, 6, 8, 10, 12, 14, 16, 18
    sNONCE = 6
    sBAD = 8
    sDRY = 3
    sQRD = 9
    SRDK, SRDV, SRDW = 20, 24, 28
    sC = 32
    sB = 40
    sD = 49
    sSTP = 0
    sG, sI, sW, sS, sSH, sNR, sR = 57, 58, 59, 60, 61, 62, 63
    sSOFF = 64
    sJ16 = 72
    sMK = 80
    sT0, sT1, sT2, sT3 = 96, 97, 98, 99
    sWB, sCH = 100, 101
    sU = sB + 8
    vVOFF = 2
    vKA = 6
    vVA = 14
    vPW, vPR = 18, 19
    vCTXH, vCTXR = 20, 21
    vLIM = 22
    vMAX, vNINF = 30, 31
    vQ = 32
    vS = 64
    vKF = 128
    vVF = 160
    vT = 160
    vTMP = 192
    vONE = 208
    vOOFF = 212
    vX, vOFF, vTT, vM32, vJ, vID = 213, 214, 215, 216, 217, 218
    vNMC = 219
    vNON = 220
    vZERO = 222
    vST = 223
    vACO = 224
    vACL = 240
    t0, t1, t2, t3, t4, t5 = (vTMP + k for k in range(6))
    NT = " nt" if OPT["nt"] else ""

    def stamp():
        if not OPT["stamps"]:
            return
        a("s_memrealtime %s" % sp(sSTP))
        a("s_waitcnt lgkmcnt(0)")
        a("v_writelane_b32 %s, s%d, %d" % (vr(vST), sSTP, a.nstamp))
        a.nstamp += 1

    def chain():
        a("v_mov_b32 %s, 0" % vr(vOFF))
        for b in range(1, 8):
            a("v_cmpx_le_u32 vcc, s%d, %s" % (sB + b, vr(vX)))
            a("v_mov_b32 %s, s%d" % (vr(vOFF), sD + b))
        a("s_mov_b64 exec, -1")
        a("v_add_u32 %s, %s, %s" % (vr(vTT), vr(vX), vr(vOFF)))

    def chunk_index():
        a("s_lshl_b32 s%d, s%d, 5" % (sT0, sR))
        a("s_add_u32 s%d, s%d, s%d" % (sCH, sI, sT0))

    def decode8():
        chunk_index()
        a("s_lshl2_add_u32 s%d, s%d, s%d" % (sT0, sCH, sW))
        a("s_mul_i32 s%d, s%d, s%d" % (sT1, sT0, sU))
        a("s_add_u32 s%d, s%d, s%d" % (sT2, sT1, sU))
        a("s_lshr_b32 s%d, s%d, s%d" % (sT1, sT1, sSH))
        a("s_lshr_b32 s%d, s%d, s%d" % (sT2, sT2, sSH))
        a("v_add_u32 %s, s%d, v1" % (vr(vX), sT1))
        chain()
        a("v_cmp_gt_u32 vcc, s%d, %s" % (sT2, vr(vX)))

    def decode32():
        chunk_index()
        a("s_lshl_b32 s%d, s%d, 2" % (sT0, sCH))
        a("v_lshrrev_b32 %s, 3, v1" % vr(t0))
        a("v_add_u32 %s, s%d, %s" % (vr(t0), sT0, vr(t0)))
        a("v_mul_lo_u32 %s, %s, s%d" % (vr(t0), vr(t0), sU))
        a("v_add_u32 %s, s%d, %s" % (vr(t1), sU, vr(t0)))
        a("v_lshrrev_b32 %s, s%d, %s" % (vr(t0), sSH, vr(t0)))
        a("v_lshrrev_b32 %s, s%d, %s" % (vr(t1), sSH, vr(t1)))
        a("v_and_b32 %s, 7, v1" % vr(t2))
        a("v_add_u32 %s, %s, %s" % (vr(vX), vr(t0), vr(t2)))
        chain()
        a("v_cmp_gt_u32 vcc, %s, %s" % (vr(t1), vr(vX)))

    def maskinfo():
        a("v_and_b32 %s, 0xff, %s" % (vr(vJ), vr(vTT)))
        a("v_lshlrev_b32 %s, 4, %s" % (vr(vJ), vr(vJ)))
        a("v_lshrrev_b32 %s, 8, %s" % (vr(t1), vr(vTT)))
        a("v_lshlrev_b32 %s, 2, %s" % (vr(t1), vr(t1)))
        a("v_lshlrev_b32_e64 %s, %s, 15" % (vr(vM32), vr(t1)))
        a("v_cmp_gt_u32 %s, s%d, %s" % (sp(sMK), sS, vr(vX)))
        a("v_mov_b32 %s, -1" % vr(t1))
        a("s_nop 0")
        a("v_cndmask_b32 %s, %s, %s, %s" % (vr(vM32), vr(vM32), vr(t1), sp(sMK)))
        a("v_cndmask_b32 %s, 0, %s, vcc" % (vr(vM32), vr(vM32)))

    def ids_to_soff():
        a("v_mov_b32 %s, 0x%x" % (vr(t1), NPHYS))
        a("v_min_u32 %s, 0x%x, %s" % (vr(vID), NPHYS, vr(vID)))
        a("v_cndmask_b32 %s, %s, %s, vcc" % (vr(vID), vr(t1), vr(vID)))
        a("v_lshlrev_b32 %s, 15, %s" % (vr(vID), vr(vID)))

    def partition():
        vTO = vTMP + 8
        a("s_mov_b32 s%d, 0" % sBAD)
        a("s_load_dwordx8 s[%d:%d], %s, 0" % (sC, sC + 7, sp(sCTX)))
        a("v_lshlrev_b32 %s, 4, v1" % vr(vTO))
        a("v_add_u32 %s, 0x1000, %s" % (vr(vTO + 1), vr(vTO)))
        for b in range(8):
            a("global_load_dwordx4 %s, %s, %s offset:%d" % (
                vr(vT + 4 * b, 4), vr(vTO if b < 4 else vTO + 1), sp(sBT), (b & 3) * 1024))
        a("s_waitcnt lgkmcnt(0)")
        for b in range(8):
            a("s_cmp_lt_i32 s%d, 1" % (sC + b))
            a("s_cselect_b32 s%d, 0x1000, s%d" % (sC + b, sC + b))
            a("s_min_i32 s%d, s%d, 0x1000" % (sC + b, sC + b))
            a("s_add_i32 s%d, s%d, 15" % (sC + b, sC + b))
            a("s_lshr_b32 s%d, s%d, 4" % (sC + b, sC + b))
        a("s_max_u32 s%d, s%d, s%d" % (sT0, sC, sC + 1))
        for b in range(2, 8):
            a("s_max_u32 s%d, s%d, s%d" % (sT0, sT0, sC + b))
        a("s_waitcnt vmcnt(0)")
        for c in range(4):
            a("v_sad_u32 %s, %s, %s, 0" % (vr(t0 + c), vr(vT + 4 + c), vr(vT + c)))
        for b in range(2, 8):
            for c in range(4):
                a("v_sad_u32 %s, %s, %s, %s" % (vr(t0 + c), vr(vT + 4 * b + c), vr(vT + c), vr(t0 + c)))
        for c in range(4):
            a("v_cmp_ne_u32 %s, 0, %s" % (sp(sMK + 2 * c), vr(t0 + c)))
        a("s_nop 3")
        for c in range(4):
            a("s_ff1_i32_b64 s%d, %s" % (sJ16 + c, sp(sMK + 2 * c)))
            a("s_lshl2_add_u32 s%d, s%d, %d" % (sJ16 + c, sJ16 + c, c))
        a("s_min_u32 s%d, s%d, s%d" % (sS, sJ16, sJ16 + 1))
        a("s_min_u32 s%d, s%d, s%d" % (sS, sS, sJ16 + 2))
        a("s_min_u32 s%d, s%d, s%d" % (sS, sS, sJ16 + 3))
        a("s_min_u32 s%d, s%d, s%d" % (sS, sS, sT0))
        a("s_mov_b32 s%d, s%d" % (sB, sS))
        for b in range(8):
            a("s_sub_i32 s%d, s%d, s%d" % (sT1, sC + b, sS))
            a("s_max_i32 s%d, s%d, 0" % (sT1, sT1))
            a("s_add_u32 s%d, s%d, s%d" % (sB + b + 1, sB + b, sT1))
            if b >= 1:
                a("s_sub_u32 s%d, s%d, s%d" % (sD + b, sS, sB + b))
                a("s_add_u32 s%d, s%d, %d" % (sD + b, sD + b, 256 * b))
        a("s_cmp_gt_u32 s%d, 1024" % sU)
        a("s_cselect_b32 s%d, 8, 7" % sSH)
        a("s_cselect_b32 s%d, 2, 1" % sNR)
        a("s_mov_b32 s%d, 0" % sR)

    def srd(dst, p, n):
        a("s_mov_b32 s%d, s%d" % (dst, p))
        a("s_and_b32 s%d, s%d, 0xffff" % (dst + 1, p + 1))
        a("s_mov_b32 s%d, 0x%x" % (dst + 2, n))
        a("s_mov_b32 s%d, 0x20000" % (dst + 3))

    def nonce_wait(tag):
        a.lab("L_noncewait" + tag)
        a("v_readfirstlane_b32 s%d, %s" % (sNONCE, vr(vNON)))
        a("v_readfirstlane_b32 s%d, %s" % (sNONCE + 1, vr(vNON + 1)))
        a("s_nop 1")
        a("s_cmp_lg_u32 s%d, 0" % sNONCE)
        a("s_cbranch_scc1 L_nonceok" + tag)
        a("s_sleep 2")
        a("global_load_dwordx2 %s, %s, %s sc1" % (vr(vNON, 2), vr(vZERO), sp(sDBG)))
        a("s_waitcnt vmcnt(0)")
        a("s_branch L_noncewait" + tag)
        a.lab("L_nonceok" + tag)

    def stampout(nw):
        a("s_mul_i32 s96, s2, 5")
        a("s_add_u32 s96, s96, s%d" % sW)
        a("s_lshl_b32 s96, s96, 6")
        a("s_add_u32 s96, s96, 0x%x" % WS_STAMP)
        a("v_lshlrev_b32 %s, 2, v1" % vr(t0))
        a("s_mov_b64 exec, 0xffff")
        a("buffer_store_dword %s, %s, %s, s96 offen" % (vr(vST), vr(t0), sq(SRDW)))
        a("s_endpgm")

    a.lab(NAME + "_kernel")
    a("s_cmp_ge_u32 s2, 256")
    a("s_cbranch_scc1 L_end")
    a("s_load_dwordx16 s[4:19], s[0:1], 0")
    a("v_and_b32 v1, 63, v0")
    a("v_lshrrev_b32 v2, 6, v0")
    a("s_and_b32 s%d, s2, 7" % sG)
    if OPT.get("perm"):
        packed = 0
        for x, g in enumerate(OPT["perm"]):
            packed |= g << (4 * x)
        a("s_lshl_b32 s%d, s%d, 2" % (sG, sG))
        a("s_lshr_b32 s%d, 0x%x, s%d" % (sG, packed, sG))
        a("s_and_b32 s%d, s%d, 7" % (sG, sG))
    a("s_lshr_b32 s%d, s2, 3" % sI)
    a("v_readfirstlane_b32 s%d, v2" % sW)
    if OPT["stamps"]:
        a("v_mov_b32 %s, 0" % vr(vST))
        a("s_memrealtime %s" % sp(96))
        a("s_waitcnt lgkmcnt(0)")
        a("v_writelane_b32 %s, s96, 0" % vr(vST))
        a.nstamp = 1
    a.c("predicted partition (verified against the real table / lengths below)")
    nb = [(c + 15) // 16 for c in PRED_CTX]
    B = [PRED_S]
    for b in range(8):
        B.append(B[-1] + max(nb[b] - PRED_S, 0))
    a("s_mov_b32 s%d, %d" % (sS, PRED_S))
    for k in range(9):
        a("s_mov_b32 s%d, %d" % (sB + k, B[k]))
    for b in range(1, 8):
        a("s_mov_b32 s%d, %d" % (sD + b, PRED_S - B[b] + 256 * b))
    a("s_mov_b32 s%d, 7" % sSH)
    a("s_mov_b32 s%d, 1" % sNR)
    a("s_mov_b32 s%d, 0" % sR)
    a("s_mov_b32 s%d, 0" % sDRY)
    a("v_mov_b32 %s, 0" % vr(vZERO))
    a("s_cmp_eq_u32 s%d, 4" % sW)
    a("s_cbranch_scc1 LD_entry")

    st0 = a.nstamp
    a("s_lshl_b32 s%d, s%d, 15" % (sWB, sW))
    decode8()
    maskinfo()
    vTO, vQO, vCO = vTMP + 8, vTMP + 10, vTMP + 11
    a("v_lshlrev_b32 %s, 4, v1" % vr(vTO))
    a("s_lshl_b32 s%d, s%d, 11" % (sT0, sW))
    a("v_add_u32 %s, s%d, %s" % (vr(vTO), sT0, vr(vTO)))
    a("v_bfe_u32 %s, v1, 2, 3" % vr(t0))
    a("v_lshlrev_b32 %s, 2, %s" % (vr(vCO), vr(t0)))
    a("v_and_b32 %s, 31, v1" % vr(t0))
    a("v_lshrrev_b32 %s, 5, v1" % vr(t1))
    a("v_lshlrev_b32 %s, 4, %s" % (vr(t0), vr(t0)))
    a("v_lshl_add_u32 %s, %s, 12, %s" % (vr(t0), vr(t1), vr(t0)))
    a("s_lshl_b32 s%d, s%d, 9" % (sT1, sW))
    a("v_add_u32 %s, s%d, %s" % (vr(vOOFF), sT1, vr(t0)))
    a("s_waitcnt lgkmcnt(0)")
    stamp()
    a("s_load_dwordx8 s[%d:%d], %s, 0" % (sC, sC + 7, sp(sCTX)))
    a("global_load_dword %s, %s, %s" % (vr(vCTXR), vr(vCO), sp(sCTX)))
    vTS = 236
    for r in range(2):
        a("global_load_dwordx4 %s, %s, %s offset:%d" % (vr(vTS + 4 * r, 4), vr(vTO), sp(sBT), r * 1024))
    srd(SRDW, sWS, WS_SIZE)
    a("s_mov_b32 s%d, 0" % sQRD)
    if OPT["prewarm"]:
        a.c("address-translation warm-up for the record area and the output")
        a("s_lshl_b32 s%d, s%d, 6" % (sT0, sG))
        a("s_add_u32 s%d, s%d, s%d" % (sT0, sT0, sI))
        a("s_lshl_b32 s%d, s%d, 15" % (sT1, sT0))
        a("s_add_u32 s%d, s%d, 0x%x" % (sT1, sT1, WS_O))
        a("s_lshl_b32 s%d, s%d, 11" % (sT2, sT0))
        a("s_add_u32 s%d, s%d, 0x%x" % (sT2, sT2, WS_ML))
        a("buffer_load_dword %s, %s, %s, s%d offen" % (vr(vACO), vr(vZERO), sq(SRDW), sT1))
        a("buffer_load_dword %s, %s, %s, s%d offen" % (vr(vACO + 1), vr(vZERO), sq(SRDW), sT2))
        a("global_load_dword %s, %s, %s" % (vr(vACO + 2), vr(vZERO), sp(sOUT)))
    a.c("nonce: workgroup 0 / wave 0 publishes a per-launch tag in d_debug")
    a("s_or_b32 s%d, s2, s%d" % (sT0, sW))
    a("s_cmp_lg_u32 s%d, 0" % sT0)
    a("s_cbranch_scc1 L_nononce")
    a("s_memrealtime %s" % sp(96))
    a("s_waitcnt lgkmcnt(0)")
    a("s_or_b32 s96, s96, 1")
    a("v_mov_b32 %s, s96" % vr(t0))
    a("v_mov_b32 %s, s97" % vr(t1))
    a("s_mov_b64 exec, 1")
    a("global_store_dwordx2 %s, %s, %s sc1" % (vr(vZERO), vr(t0, 2), sp(sDBG)))
    a("s_mov_b64 exec, -1")
    a.lab("L_nononce")
    if OPT.get("dry"):
        a.c("one wave walks the combine code once (no memory access) so that it is in the instruction cache later")
        a("s_cmp_eq_u32 s%d, 3" % sW)
        a("s_cbranch_scc1 LD_dry")
        a.lab("C_dry_ret")
        a("s_mov_b32 s%d, 0" % sDRY)
    a.c("remaining lane constants")
    a("v_and_b32 %s, 31, v1" % vr(t0))
    a("v_lshrrev_b32 %s, 5, v1" % vr(t1))
    a("v_and_b32 %s, 3, v1" % vr(t2))
    a("v_bfe_u32 %s, v1, 2, 2" % vr(vTMP + 6))
    a("v_lshl_or_b32 %s, %s, 2, %s" % (vr(t2), vr(t2), vr(vTMP + 6)))
    a("v_xor_b32 %s, %s, %s" % (vr(t2), vr(t2), vr(t1)))
    a("v_lshlrev_b32 %s, 4, %s" % (vr(t2), vr(t2)))
    a("v_lshl_add_u32 %s, %s, 8, %s" % (vr(t2), vr(t0), vr(t2)))
    a("v_add_u32 %s, s%d, %s" % (vr(vKA), sWB, vr(t2)))
    for s in range(1, 8):
        a("v_xor_b32 %s, %d, %s" % (vr(vKA + s), s << 5, vr(vKA)))
    u0, u1, u2, u3, u4, u5 = (vLIM + k for k in range(6))
    a("v_bfe_u32 %s, v1, 2, 2" % vr(u0))
    a("v_lshrrev_b32 %s, 5, v1" % vr(u1))
    a("v_bfe_u32 %s, v1, 4, 1" % vr(u2))
    a("v_bfe_u32 %s, v1, 1, 1" % vr(u3))
    a("v_lshl_or_b32 %s, %s, 1, %s" % (vr(u2), vr(u2), vr(u3)))
    a("s_lshl_b32 s%d, s%d, 2" % (sT1, sW))
    a("v_or_b32 %s, s%d, %s" % (vr(u2), sT1, vr(u2)))
    for u in range(2):
        a("v_lshl_or_b32 %s, %s, 2, %s" % (vr(u3), vr(u0), vr(u1)))
        if u:
            a("v_or_b32 %s, 2, %s" % (vr(u3), vr(u3)))
        a("v_xor_b32 %s, %s, %s" % (vr(u3), vr(u3), vr(u2)))
        a("v_lshlrev_b32 %s, 4, %s" % (vr(u3), vr(u3)))
        a("v_lshl_add_u32 %s, %s, 2, %s" % (vr(u4), vr(u1), vr(u0)))
        a("v_add_u32 %s, %d, %s" % (vr(u4), 8 * u, vr(u4)))
        a("v_lshl_add_u32 %s, %s, 8, %s" % (vr(u3), vr(u4), vr(u3)))
        a("v_and_b32 %s, 1, v1" % vr(u5))
        a("v_lshl_add_u32 %s, %s, 3, %s" % (vr(vVA + u), vr(u5), vr(u3)))
        a("v_add_u32 %s, 0x10000, %s" % (vr(vVA + 2 + u), vr(vVA + u)))
    a("v_lshlrev_b32 %s, 4, v1" % vr(u0))
    a("v_add_u32 %s, 0x20000, %s" % (vr(vPR), vr(u0)))
    a("s_lshl_b32 s%d, s%d, 13" % (sT1, sW))
    a("v_add_u32 %s, s%d, %s" % (vr(vPW), sT1, vr(vPR)))
    a("v_mov_b32 %s, 0xff800000" % vr(vNINF))
    for k in range(4):
        a("v_mov_b32 %s, 0x3f803f80" % vr(vONE + k))
    a.c("verify the prediction: lengths (scalar) and table rows 2w, 2w+1")
    a("s_waitcnt lgkmcnt(0)")
    a("s_mov_b32 s%d, 0" % sBAD)
    for b in range(8):
        a("s_cmp_lg_u32 s%d, %d" % (sC + b, PRED_CTX[b]))
        a("s_cselect_b32 s%d, 1, s%d" % (sBAD, sBAD))
    a("s_waitcnt vmcnt(%d)" % (3 if OPT["prewarm"] else 0))
    a("v_lshrrev_b32 %s, 5, v1" % vr(u0))
    a("v_lshlrev_b32 %s, 7, %s" % (vr(u0), vr(u0)))
    a("v_lshlrev_b32 %s, 2, v1" % vr(u1))
    a("s_lshl_b32 s%d, s%d, 1" % (sT0, sW))
    a("v_mov_b32 %s, 0" % vr(u3))
    for r in range(2):
        a("v_mad_u32_u24 %s, %s, s%d, %s" % (vr(u2), vr(u0), sT0, vr(u1)))
        for c in range(4):
            a("v_add_u32 %s, %d, %s" % (vr(u4), c, vr(u2)))
            a("v_sad_u32 %s, %s, %s, %s" % (vr(u3), vr(vTS + 4 * r + c), vr(u4), vr(u3)))
        a("s_add_u32 s%d, s%d, 1" % (sT0, sT0))
    a("v_cmp_ne_u32 vcc, 0, %s" % vr(u3))
    a("s_nop 3")
    a("s_cmp_lg_u64 vcc, 0")
    a("s_cselect_b32 s%d, 1, s%d" % (sBAD, sBAD))
    a("s_branch C_body")

    a.lab("C_generic")
    partition()
    a.lab("C_round")
    decode8()
    maskinfo()

    a.lab("C_body")
    a("v_cmp_gt_i32 vcc, 1, %s" % vr(vCTXR))
    a("v_mov_b32 %s, 0x1000" % vr(t0))
    a("v_min_i32 %s, 0x1000, %s" % (vr(t1), vr(vCTXR)))
    a("v_cndmask_b32 %s, %s, %s, vcc" % (vr(t1), vr(t1), vr(t0)))
    a("v_lshrrev_b32 %s, 5, v1" % vr(t2))
    a("v_lshlrev_b32 %s, 2, %s" % (vr(t2), vr(t2)))
    a("v_sub_u32 %s, %s, %s" % (vr(vCTXH), vr(t1), vr(t2)))
    for u in range(8):
        a("v_readlane_b32 s%d, %s, %d" % (sJ16 + u, vr(vJ), u))
        a("v_readlane_b32 s%d, %s, %d" % (sMK + 2 * u, vr(vM32), u))
        a("v_readlane_b32 s%d, %s, %d" % (sMK + 2 * u + 1, vr(vM32), u))
    a("s_nop 1")
    for u in range(8):
        a("v_cndmask_b32 %s, 0, %s, %s" % (vr(vLIM + u), vr(vCTXH), sp(sMK + 2 * u)))
    for u in range(8):
        a("v_subrev_u32 %s, s%d, %s" % (vr(vLIM + u), sJ16 + u, vr(vLIM + u)))
    a("v_mov_b32 %s, %s" % (vr(vMAX), vr(vNINF)))
    a.c("relevance mask of the 8 batches for this chunk, record bases")
    sU0, sU1, sREL, sOB, sMB = sSOFF, sSOFF + 1, sSOFF + 2, sSOFF + 3, sSOFF + 4
    a("s_lshl_b32 s%d, s%d, 2" % (sT0, sCH))
    a("s_mul_i32 s%d, s%d, s%d" % (sU0, sT0, sU))
    a("s_lshl2_add_u32 s%d, s%d, s%d" % (sU1, sU, sU0))
    a("s_lshr_b32 s%d, s%d, s%d" % (sU0, sU0, sSH))
    a("s_lshr_b32 s%d, s%d, s%d" % (sU1, sU1, sSH))
    a("s_mov_b32 s%d, 0" % sREL)
    for b in range(8):
        a("s_cmp_lt_u32 s%d, s%d" % (sU0, sB + b + 1))
        a("s_cselect_b32 s%d, %d, 0" % (sT0, 1 << b))
        a("s_cmp_gt_u32 s%d, s%d" % (sU1, sB + b))
        a("s_cselect_b32 s%d, s%d, 0" % (sT0, sT0))
        a("s_or_b32 s%d, s%d, s%d" % (sREL, sREL, sT0))
    a("s_cmp_lt_u32 s%d, s%d" % (sU0, sS))
    a("s_cselect_b32 s%d, 0xff, s%d" % (sREL, sREL))
    a("s_lshl_b32 s%d, s%d, 6" % (sT0, sG))
    a("s_add_u32 s%d, s%d, s%d" % (sT0, sT0, sCH))
    a("s_lshl_b32 s%d, s%d, 15" % (sOB, sT0))
    a("s_add_u32 s%d, s%d, 0x%x" % (sOB, sOB, WS_O))
    a("s_lshl_b32 s%d, s%d, 11" % (sMB, sT0))
    a("s_add_u32 s%d, s%d, 0x%x" % (sMB, sMB, WS_ML))
    a("s_lshl_b32 s%d, s%d, 6" % (sT0, sW))
    a("s_add_u32 s%d, s%d, s%d" % (sMB, sMB, sT0))

    a.c("S phase")
    for t in range(4):
        a("s_barrier")
        stamp()
        if t == 0:
            a.c("Q fragments from the staged copy (first pass only); zero Q of empty-context batches")
            a("s_cmp_lg_u32 s%d, 0" % sQRD)
            a("s_cbranch_scc1 L_qdone")
            a("s_mov_b32 s%d, 1" % sQRD)
            a("s_sub_u32 s%d, 0x20000, s%d" % (sT0, sWB))
            for s in range(8):
                a("v_add_u32 %s, s%d, %s" % (vr(vVF + s), sT0, vr(vKA + s)))
            for s in range(8):
                a("ds_read_b128 %s, %s" % (vr(vQ + 4 * s, 4), vr(vVF + s)))
            a("v_cmp_lt_i32 vcc, 0, %s" % vr(vCTXR))
            a("s_waitcnt lgkmcnt(0)")
            for k in range(32):
                a("v_cndmask_b32 %s, 0, %s, vcc" % (vr(vQ + k), vr(vQ + k)))
            a.lab("L_qdone")
        for s in range(8):
            a("ds_read_b128 %s, %s offset:%d" % (vr(vKF + 4 * s, 4), vr(vKA + s), t * 8192))
        for s in range(8):
            a("s_waitcnt lgkmcnt(%d)" % (7 - s))
            a("v_mfma_f32_32x32x16_bf16 %s, %s, %s, %s" % (
                vr(vS + 16 * t, 16), vr(vKF + 4 * s, 4), vr(vQ + 4 * s, 4),
                "0" if s == 0 else vr(vS + 16 * t, 16)))
        if t == 3:
            a("global_load_dwordx2 %s, %s, %s sc1" % (vr(vNON, 2), vr(vZERO), sp(sDBG)))
        a("s_nop 3")
        for half in range(2):
            u = 2 * t + half
            for r8 in range(8):
                const = 8 * ((r8 >> 2) & 1) + (r8 & 3)
                a("v_cmp_lt_i32 %s, %d, %s" % (sp(sMK + 2 * r8), const, vr(vLIM + u)))
            for r8 in range(8):
                r = vS + 16 * t + 8 * half + r8
                a("v_cndmask_b32 %s, %s, %s, %s" % (vr(r), vr(vNINF), vr(r), sp(sMK + 2 * r8)))
            for r8 in range(0, 8, 2):
                r = vS + 16 * t + 8 * half + r8
                a("v_max3_f32 %s, %s, %s, %s" % (vr(vMAX), vr(vMAX), vr(r), vr(r + 1)))
    a.c("max exchange: every wave writes {max[32], flag[32]} into the P area of every compute wave")
    a("v_mov_b32 %s, %s" % (vr(t0), vr(vMAX)))
    a("s_nop 1")
    a("v_permlane32_swap_b32 %s, %s" % (vr(vMAX), vr(t0)))
    a("v_mov_b32 %s, s%d" % (vr(t1), sBAD))
    a("v_cmp_gt_u32 vcc, 32, v1")
    a("v_max_f32 %s, %s, %s" % (vr(vMAX), vr(vMAX), vr(t0)))
    a("v_lshlrev_b32 %s, 2, v1" % vr(t2))
    a("v_cndmask_b32 %s, %s, %s, vcc" % (vr(t3), vr(t1), vr(vMAX)))
    a("s_lshl_b32 s%d, s%d, 8" % (sT0, sW))
    a("s_add_u32 s%d, s%d, 0x20000" % (sT0, sT0))
    a("v_add_u32 %s, s%d, %s" % (vr(t2), sT0, vr(t2)))
    for w in range(4):
        a("ds_write_b32 %s, %s offset:%d" % (vr(t2), vr(t3), w * 8192))
    a("s_add_u32 s%d, s%d, %d" % (sT0, sWB, 3 * 8192))
    a("v_mov_b32 %s, s%d" % (vr(t2), sT0))
    a("ds_write_b32 %s, %s" % (vr(t2), vr(t1)))
    a("v_and_b32 %s, 31, v1" % vr(t3))
    a("v_lshlrev_b32 %s, 2, %s" % (vr(t3), vr(t3)))
    a("s_lshl_b32 s%d, s%d, 13" % (sT0, sW))
    a("s_add_u32 s%d, s%d, 0x20000" % (sT0, sT0))
    a("v_add_u32 %s, s%d, %s" % (vr(t3), sT0, vr(t3)))
    a("s_waitcnt lgkmcnt(0)")
    a("s_barrier")
    stamp()
    X = vKF
    for w in range(4):
        a("ds_read2_b32 %s, %s offset0:%d offset1:%d" % (vr(X + 2 * w, 2), vr(t3), w * 64, w * 64 + 32))
    a("s_waitcnt lgkmcnt(0)")
    a("v_or3_b32 %s, %s, %s, %s" % (vr(t0), vr(X + 1), vr(X + 3), vr(X + 5)))
    a("v_or_b32 %s, %s, %s" % (vr(t0), vr(t0), vr(X + 7)))
    a("v_max3_f32 %s, %s, %s, %s" % (vr(vMAX), vr(X), vr(X + 2), vr(X + 4)))
    a("v_readfirstlane_b32 s%d, %s" % (sT0, vr(t0)))
    a("v_mov_b32 %s, %s" % (vr(t0), f32hex(-1e30)))
    a("v_max3_f32 %s, %s, %s, %s" % (vr(vMAX), vr(vMAX), vr(X + 6), vr(t0)))
    a("s_nop 1")
    a("s_cmp_lg_u32 s%d, 0" % sT0)
    a("s_cbranch_scc1 C_fallback")
    a("s_mov_b32 s%d, %s" % (sT0, f32hex(SCALE_LOG2)))
    a("v_mul_f32 %s, %s, %s" % (vr(vNMC), f32hex(-SCALE_LOG2), vr(vMAX)))
    a.c("P phase (+ row sums of this wave's P through a ones-MFMA)")
    GA, GB = vTMP + 8, vTMP + 12
    for u in range(8):
        base = vS + 8 * u
        for k in range(8):
            a("v_fma_f32 %s, %s, s%d, %s" % (vr(base + k), vr(base + k), sT0, vr(vNMC)))
        for k in range(8):
            a("v_exp_f32 %s, %s" % (vr(base + k), vr(base + k)))
        pk = vTMP + 4 * (u & 1)
        for k in range(4):
            a("v_cvt_pk_bf16_f32 %s, %s, %s" % (vr(pk + k), vr(base + 2 * k), vr(base + 2 * k + 1)))
        a("ds_write_b128 %s, %s offset:%d" % (vr(vPW), vr(pk, 4), u * 1024))
        a("s_nop 0")
        a("v_mfma_f32_32x32x16_bf16 %s, %s, %s, %s" % (
            vr(vACL, 16), vr(vONE, 4), vr(pk, 4), "0" if u == 0 else vr(vACL, 16)))
    a("s_waitcnt vmcnt(0)")
    nonce_wait("C")
    for q in (GA, GB):
        a("v_mov_b32 %s, s%d" % (vr(q + 2), sNONCE))
        a("v_mov_b32 %s, s%d" % (vr(q + 3), sNONCE + 1))
    a("v_bfe_u32 %s, v1, 2, 3" % vr(t4))
    a("v_lshrrev_b32_e64 %s, %s, s%d" % (vr(t5), vr(t4), sREL))
    a("v_and_b32 %s, 1, %s" % (vr(t5), vr(t5)))
    a("v_cmp_eq_u32 vcc, 1, %s" % vr(t5))
    a("v_lshlrev_b32 %s, 8, %s" % (vr(t4), vr(t4)))
    a("v_and_b32 %s, 3, v1" % vr(t5))
    a("v_lshl_add_u32 %s, %s, 4, %s" % (vr(t4), vr(t5), vr(t4)))
    a("v_mov_b32 %s, %s" % (vr(GA), vr(vMAX)))
    a("v_mov_b32 %s, %s" % (vr(GA + 1), vr(vACL)))
    a("s_and_b32 exec_lo, vcc_lo, -1")
    a("s_mov_b32 exec_hi, 0")
    a("s_cbranch_execz L_noml2")
    a("buffer_store_dwordx4 %s, %s, %s, s%d offen sc1" % (vr(GA, 4), vr(t4), sq(SRDW), sMB))
    a.lab("L_noml2")
    a("s_mov_b64 exec, -1")
    a("s_waitcnt lgkmcnt(0)")
    a("s_barrier")
    stamp()
    a.c("PV phase")
    PF = lambda k: vS + 4 * (k & 15)
    VF = lambda k: vKF + 4 * (k & 15)

    def rd_p(t, k8):
        w, s_ = k8 >> 1, k8 & 1
        a("ds_read_b128 %s, %s offset:%d" % (vr(PF(8 * t + k8), 4), vr(vPR), (w * 8 + 2 * t + s_) * 1024))

    def rd_v(t, k8):
        w, s_ = k8 >> 1, k8 & 1
        for u in range(2):
            a("ds_read_b64_tr_b16 %s, %s offset:%d" % (
                vr(VF(8 * t + k8) + 2 * u, 2), vr(vVA + 2 * (w >> 1) + u),
                (w & 1) * 32768 + t * 8192 + s_ * 4096))

    def mf_l(t, k8):
        a("v_mfma_f32_32x32x16_bf16 %s, %s, %s, %s" % (
            vr(vACL, 16), vr(vONE, 4), vr(PF(8 * t + k8), 4),
            "0" if (t == 0 and k8 == 0) else vr(vACL, 16)))

    def mf_o(t, k8):
        a("v_mfma_f32_32x32x16_bf16 %s, %s, %s, %s" % (
            vr(vACO, 16), vr(PF(8 * t + k8), 4), vr(VF(8 * t + k8), 4),
            "0" if (t == 0 and k8 == 0) else vr(vACO, 16)))

    seq = [(t, k) for t in range(2) for k in range(8)]
    for i in range(4):
        rd_p(*seq[i])
        rd_v(*seq[i])
    for i, (t, k) in enumerate(seq):
        ahead = min(3, len(seq) - 1 - i)
        a("s_waitcnt lgkmcnt(%d)" % (3 * ahead))
        mf_o(t, k)
        if i + 4 < len(seq):
            rd_p(*seq[i + 4])
            rd_v(*seq[i + 4])
    for t in (2, 3):
        for k in range(8):
            rd_p(t, k)
    for t in (2, 3):
        if t == 2:
            a("s_waitcnt lgkmcnt(0)")
        a("s_barrier")
        stamp()
        for k in range(8):
            rd_v(t, k)
        for k in range(8):
            a("s_waitcnt lgkmcnt(%d)" % (14 - 2 * k))
            mf_o(t, k)
    a("s_nop 8")
    a.c("publish O")
    for gq in range(4):
        a("s_bfe_i32 exec_lo, s%d, 0x%x" % (sREL, 0x10000 | (2 * gq)))
        a("s_bfe_i32 exec_hi, s%d, 0x%x" % (sREL, 0x10000 | (2 * gq + 1)))
        a("s_add_u32 s%d, s%d, %d" % (sT2, sOB, gq * 8192))
        a("s_cbranch_execz L_skipo%d" % gq)
        a("v_mov_b32 %s, %s" % (vr(GA), vr(vACO + 4 * gq)))
        a("v_mov_b32 %s, %s" % (vr(GA + 1), vr(vACO + 4 * gq + 1)))
        a("v_mov_b32 %s, %s" % (vr(GB), vr(vACO + 4 * gq + 2)))
        a("v_mov_b32 %s, %s" % (vr(GB + 1), vr(vACO + 4 * gq + 3)))
        a("buffer_store_dwordx4 %s, %s, %s, s%d offen sc1" % (vr(GA, 4), vr(vOOFF), sq(SRDW), sT2))
        a("buffer_store_dwordx4 %s, %s, %s, s%d offen offset:2048 sc1" % (vr(GB, 4), vr(vOOFF), sq(SRDW), sT2))
        a("s_nop 1")
        a.lab("L_skipo%d" % gq)
    a("s_mov_b64 exec, -1")
    stamp()
    a("s_add_u32 s%d, s%d, 1" % (sR, sR))
    a("s_cmp_ge_u32 s%d, s%d" % (sR, sNR))
    if OPT["stamps"]:
        a("s_cbranch_scc1 C_stampout")
    else:
        a("s_cbranch_scc1 L_end")
    a("s_waitcnt vmcnt(0)")
    a("s_barrier")
    a("s_branch C_round")
    a.lab("C_fallback")
    a("s_waitcnt vmcnt(0) lgkmcnt(0)")
    a("s_barrier")
    a("s_branch C_generic")
    if OPT["stamps"]:
        a.lab("C_stampout")
        stampout(5)

    a.lab("LD_entry")
    a.nstamp = st0
    a("v_lshrrev_b32 %s, 4, v1" % vr(t0))
    a("v_and_b32 %s, 15, v1" % vr(t1))
    a("s_lshl_b32 s%d, s%d, 8" % (sT0, sG))
    for p in range(4):
        a("v_lshl_or_b32 %s, %s, 2, %d" % (vr(t2), vr(t0), p))
        a("v_xor_b32 %s, %s, %s" % (vr(t2), vr(t2), vr(t1)))
        a("v_lshlrev_b32 %s, 4, %s" % (vr(t2), vr(t2)))
        a("v_lshl_add_u32 %s, %s, 11, %s" % (vr(t2), vr(t0), vr(t2)))
        a("v_add_u32 %s, %d, %s" % (vr(t2), p * 8192 - 1024 * p, vr(t2)))
        a("v_add_u32 %s, s%d, %s" % (vr(vVOFF + p), sT0, vr(t2)))
    decode32()
    a("v_lshrrev_b32 %s, 8, %s" % (vr(t0), vr(vTT)))
    a("v_and_b32 %s, 0xff, %s" % (vr(vID), vr(vTT)))
    a("v_lshl_add_u32 %s, %s, 7, %s" % (vr(vID), vr(t0), vr(vID)))
    ids_to_soff()
    vQV = 32
    a("v_lshrrev_b32 %s, 4, v1" % vr(t0))
    a("v_and_b32 %s, 15, v1" % vr(t1))
    for p in range(4):
        a("v_lshl_or_b32 %s, %s, 2, %d" % (vr(t2), vr(t0), p))
        a("v_xor_b32 %s, %s, %s" % (vr(t2), vr(t2), vr(t1)))
        a("v_lshlrev_b32 %s, 4, %s" % (vr(t2), vr(t2)))
        a("v_lshl_add_u32 %s, %s, 8, %s" % (vr(vQV + p), vr(t0), vr(t2)))
    a("s_waitcnt lgkmcnt(0)")
    stamp()
    srd(SRDW, sQ, 65536)
    a("s_lshl_b32 s%d, s%d, 10" % (sT0, sG))
    for b in range(8):
        a("s_mov_b32 m0, %d" % (0x20000 + b * 1024))
        a("s_add_u32 s%d, s%d, %d" % (sT1, sT0, b * 8192))
        a("buffer_load_dwordx4 %s, %s, s%d offen lds" % (vr(vQV + (b & 3)), sq(SRDW), sT1))
    srd(SRDK, sK, KV_BYTES)
    srd(SRDV, sV, KV_BYTES)
    srd(SRDW, sWS, WS_SIZE)
    a("s_branch LD_issue")
    a.lab("LD_generic")
    partition()
    a.lab("LD_round")
    decode32()
    a("v_lshlrev_b32 %s, 2, %s" % (vr(t0), vr(vTT)))
    a("s_nop 0")
    a("v_cndmask_b32 %s, 0, %s, vcc" % (vr(t0), vr(t0)))
    a("global_load_dword %s, %s, %s" % (vr(vID), vr(t0), sp(sBT)))
    a("s_waitcnt vmcnt(0)")
    ids_to_soff()
    a("s_nop 1")
    a.lab("LD_issue")

    def rnd(r):
        srdx = SRDK if r < 4 else SRDV
        rr = r & 3
        base = sSOFF if (r & 1) == 0 else sJ16
        for wv in range(4):
            for s in range(2):
                a("v_readlane_b32 s%d, %s, %d" % (base + 2 * wv + s, vr(vID), 8 * wv + 2 * rr + s))
        for wv in range(4):
            for s in range(2):
                a("s_mov_b32 m0, %d" % (wv * 32768 + (2 * rr + s) * 4096))
                a("s_nop 0")
                for p in range(4):
                    a("buffer_load_dwordx4 %s, %s, s%d offen offset:%d%s lds" % (
                        vr(vVOFF + p), sq(srdx), base + 2 * wv + s, 1024 * p, NT))

    rnd(0)
    rnd(1)
    rnd(2)
    a("s_waitcnt vmcnt(62)")
    stamp()
    a("s_barrier")
    rnd(3)
    a("s_waitcnt vmcnt(62)")
    stamp()
    a("s_barrier")
    rnd(4)
    a("s_waitcnt vmcnt(62)")
    stamp()
    a("s_barrier")
    rnd(5)
    a("s_waitcnt vmcnt(62)")
    stamp()
    a("s_barrier")
    rnd(6)
    stamp()
    a("s_barrier")
    a("v_mov_b32 %s, %d" % (vr(t0), 3 * 8192))
    a("v_mov_b32 %s, %d" % (vr(t1), 3 * 8192 + 65536))
    a("ds_read_b32 %s, %s" % (vr(t2), vr(t0)))
    a("ds_read_b32 %s, %s offset:32768" % (vr(t3), vr(t0)))
    a("ds_read_b32 %s, %s" % (vr(t4), vr(t1)))
    a("ds_read_b32 %s, %s offset:32768" % (vr(t5), vr(t1)))
    a("s_waitcnt lgkmcnt(0)")
    a("v_or3_b32 %s, %s, %s, %s" % (vr(t2), vr(t2), vr(t3), vr(t4)))
    a("v_or_b32 %s, %s, %s" % (vr(t2), vr(t2), vr(t5)))
    a("s_nop 0")
    a("v_readfirstlane_b32 s%d, %s" % (sT0, vr(t2)))
    a("s_nop 1")
    a("s_cmp_lg_u32 s%d, 0" % sT0)
    a("s_cbranch_scc1 LD_fallback")
    rnd(7)
    a("global_load_dwordx2 %s, %s, %s sc1" % (vr(vNON, 2), vr(vZERO), sp(sDBG)))
    a("s_waitcnt vmcnt(62)")
    stamp()
    a("s_barrier")
    sBt, sQD, sN1, sA2, sN, sKK, sB0, sB1, sGB, sSPIN, sCNT, sPEND = 64, 65, 66, 67, 68, 69, 70, 71, 72, 73, 74, 75
    sM = 76
    sREC = 80
    SRDO = 20
    vCST, vOO, vMO = 6, 7, 8
    vMR, vLA, vOA, vNM, vSC, vRL = 10, 12, 14, 16, 18, 232
    vA0, vA1 = 22, 23
    vML = 240
    vLW, vLR, vSL = 228, 229, 230
    vDAT = 64
    a("s_lshr_b32 s%d, s%d, 2" % (sBt, sI))
    a("s_and_b32 s%d, s%d, 3" % (sQD, sI))
    a("s_mov_b32 s%d, s%d" % (sB0, sB))
    a("s_mov_b32 s%d, s%d" % (sB1, sB + 1))
    for b in range(1, 8):
        a("s_cmp_eq_u32 s%d, %d" % (sBt, b))
        a("s_cselect_b32 s%d, s%d, s%d" % (sB0, sB + b, sB0))
        a("s_cselect_b32 s%d, s%d, s%d" % (sB1, sB + b + 1, sB1))
    a("v_lshlrev_b32 %s, 2, v1" % vr(vCST))
    a("v_mul_lo_u32 %s, %s, s%d" % (vr(vCST), vr(vCST), sU))
    a("v_lshrrev_b32 %s, s%d, %s" % (vr(vCST), sSH, vr(vCST)))
    a("s_sub_u32 s%d, s%d, 2" % (sT0, sSH))
    a("s_lshl_b32 s%d, 1, s%d" % (sT0, sT0))
    a("v_cmp_gt_u32 %s, s%d, v1" % (sp(sM), sT0))
    a("v_cmp_gt_u32 vcc, s%d, %s" % (sS, vr(vCST)))
    a("s_and_b64 vcc, vcc, %s" % sp(sM))
    a("s_bcnt1_i32_b64 s%d, vcc" % sN1)
    a("v_cmp_ge_u32 vcc, s%d, %s" % (sB0, vr(vCST)))
    a("s_and_b64 vcc, vcc, %s" % sp(sM))
    a("s_bcnt1_i32_b64 s%d, vcc" % sA2)
    a("s_sub_u32 s%d, s%d, 1" % (sA2, sA2))
    a("s_max_u32 s%d, s%d, s%d" % (sA2, sA2, sN1))
    a("v_cmp_gt_u32 vcc, s%d, %s" % (sB1, vr(vCST)))
    a("s_and_b64 vcc, vcc, %s" % sp(sM))
    a("s_bcnt1_i32_b64 s%d, vcc" % sT1)
    a("s_sub_i32 s%d, s%d, s%d" % (sT1, sT1, sA2))
    a("s_max_i32 s%d, s%d, 0" % (sT1, sT1))
    a("s_cmp_gt_u32 s%d, s%d" % (sB1, sB0))
    a("s_cselect_b32 s%d, s%d, 0" % (sT1, sT1))
    a("s_add_u32 s%d, s%d, s%d" % (sN, sN1, sT1))
    a("s_sub_u32 s%d, s%d, s%d" % (sA2, sA2, sN1))
    a("s_lshl_b32 s%d, s%d, 6" % (sGB, sG))
    a("v_and_b32 %s, 31, v1" % vr(vA0))
    a("v_lshrrev_b32 %s, 5, v1" % vr(vA1))
    a("v_lshlrev_b32 %s, 4, %s" % (vr(vOO), vr(vA0)))
    a("v_lshl_add_u32 %s, %s, 11, %s" % (vr(vOO), vr(vA1), vr(vOO)))
    a("s_lshl_b32 s%d, s%d, 9" % (sT0, sQD))
    a("s_lshl_b32 s%d, s%d, 12" % (sT1, sBt))
    a("s_add_u32 s%d, s%d, s%d" % (sT0, sT0, sT1))
    a("s_add_u32 s%d, s%d, 0x%x" % (sT0, sT0, WS_O))
    a("v_add_u32 %s, s%d, %s" % (vr(vOO), sT0, vr(vOO)))
    a("v_lshlrev_b32 %s, 3, v1" % vr(vLW))
    a("v_lshlrev_b32 %s, 4, %s" % (vr(vLR), vr(vA1)))
    a("v_lshrrev_b32 %s, 2, v1" % vr(vSL))
    for k in range(2):
        a("v_mov_b32 %s, %s" % (vr(vMR + k), f32hex(-1e30)))
        a("v_mov_b32 %s, 0" % vr(vLA + k))
        a("v_mov_b32 %s, 0" % vr(vOA + k))
    a("s_mov_b32 s%d, 0" % sKK)

    def recs():
        a("s_sub_u32 s%d, s%d, s%d" % (sCNT, sN, sKK))
        for p in range(NSLOT):
            a("s_add_u32 s%d, s%d, %d" % (sT0, sKK, p))
            a("s_cmp_gt_u32 s%d, %d" % (sCNT, p))
            a("s_cselect_b32 s%d, s%d, s%d" % (sT0, sT0, sKK))
            a("s_add_u32 s%d, s%d, s%d" % (sT1, sT0, sA2))
            a("s_cmp_lt_u32 s%d, s%d" % (sT0, sN1))
            a("s_cselect_b32 s%d, s%d, s%d" % (sT0, sT0, sT1))
            a("s_add_u32 s%d, s%d, s%d" % (sT0, sT0, sGB))
            a("s_lshl_b32 s%d, s%d, 9" % (sREC + p, sT0))
        a("v_add_u32 %s, s%d, %s" % (vr(vML), sKK, vr(vSL)))
        a("v_mov_b32 %s, s%d" % (vr(vML + 1), sKK))
        a("v_cmp_gt_u32 vcc, s%d, %s" % (sCNT, vr(vSL)))
        a("v_cmp_gt_u32 %s, %d, %s" % (sp(sM), NSLOT, vr(vSL)))
        a("s_and_b64 vcc, vcc, %s" % sp(sM))
        a("s_nop 1")
        a("v_cndmask_b32 %s, %s, %s, vcc" % (vr(vML), vr(vML + 1), vr(vML)))
        a("v_add_u32 %s, s%d, %s" % (vr(vML + 1), sA2, vr(vML)))
        a("v_cmp_gt_u32 vcc, s%d, %s" % (sN1, vr(vML)))
        a("s_nop 1")
        a("v_cndmask_b32 %s, %s, %s, vcc" % (vr(vML), vr(vML + 1), vr(vML)))
        a("v_add_u32 %s, s%d, %s" % (vr(vML), sGB, vr(vML)))
        a("v_lshlrev_b32 %s, 11, %s" % (vr(vML), vr(vML)))
        a("v_and_b32 %s, 3, v1" % vr(vML + 1))
        a("v_lshl_add_u32 %s, %s, 4, %s" % (vr(vML), vr(vML + 1), vr(vML)))
        a("s_lshl_b32 s%d, s%d, 8" % (sT0, sBt))
        a("s_add_u32 s%d, s%d, 0x%x" % (sT0, sT0, WS_ML))
        a("v_add_u32 %s, s%d, %s" % (vr(vMO), sT0, vr(vML)))
    recs()
    a("v_lshlrev_b32 %s, 9, %s" % (vr(vA1), vr(vA1)))
    a("v_lshl_add_u32 %s, %s, 1, %s" % (vr(vA1), vr(vA0), vr(vA1)))
    a("s_waitcnt vmcnt(33)")
    stamp()
    a("s_barrier")

    def ml_loads():
        for w in range(4):
            a("buffer_load_dwordx4 %s, %s, %s, 0 offen offset:%d sc1" % (vr(vML + 4 * w, 4), vr(vMO), sq(SRDW), 64 * w))
    ml_loads()
    a("s_waitcnt vmcnt(0)")
    stamp()
    a("s_barrier")
    a("s_add_u32 s%d, s%d, 1" % (sR, sR))
    a("s_cmp_ge_u32 s%d, s%d" % (sR, sNR))
    a("s_cbranch_scc1 LD_combine")
    a("s_barrier")
    a("s_branch LD_round")
    a.lab("LD_fallback")
    a("s_waitcnt vmcnt(0) lgkmcnt(0)")
    a("s_barrier")
    a("s_branch LD_generic")

    if OPT.get("dry"):
        a.lab("LD_dry")
        a("s_mov_b32 s%d, 1" % sDRY)
        a("s_mov_b32 s74, %d" % NSLOT)
        a("s_mov_b32 s68, %d" % NSLOT)
        a("s_mov_b32 s69, 0")
        a("s_mov_b32 s64, 0")
        a("s_mov_b32 s65, 0")
        a("s_mov_b32 s99, %s" % f32hex(SCALE_LOG2))
        a("v_lshlrev_b32 v228, 3, v1")
        a("v_add_u32 v228, 0x20000, v228")
        a("v_mov_b32 v229, 0x20000")
        a("v_mov_b32 v7, 0")
        a("v_mov_b32 v23, 0")
        a("s_branch L_mlok")
    a.lab("LD_combine")
    nonce_wait("L")
    if OPT["stamps"]:
        a("s_memrealtime %s" % sp(sSTP))
        a("s_waitcnt lgkmcnt(0)")
        a("v_writelane_b32 %s, s%d, 15" % (vr(vST), sSTP))
    a("s_mov_b32 s%d, %s" % (sT3, f32hex(SCALE_LOG2)))
    a("s_mov_b32 s%d, 0" % sSPIN)
    a("s_branch L_chkml")
    a.lab("L_cbatch")
    a("s_mov_b32 s%d, 0" % sSPIN)
    a.lab("L_pollml")
    ml_loads()
    a("s_waitcnt vmcnt(0)")
    a.lab("L_chkml")
    a("v_cmp_eq_u64 vcc, %s, %s" % (sp(sNONCE), vr(vML + 2, 2)))
    for w in range(1, 4):
        a("v_cmp_eq_u64 %s, %s, %s" % (sp(sM), sp(sNONCE), vr(vML + 4 * w + 2, 2)))
        a("s_and_b64 vcc, vcc, %s" % sp(sM))
    a("s_or_b32 vcc_hi, vcc_hi, 0x%x" % (0xffffffff & ~((1 << (4 * NSLOT - 32)) - 1)))
    a("s_cmp_eq_u64 vcc, -1")
    a("s_cbranch_scc1 L_mlok")
    a("s_add_u32 s%d, s%d, 1" % (sSPIN, sSPIN))
    a("s_cmp_gt_u32 s%d, 0x40000" % sSPIN)
    a("s_cbranch_scc1 L_end")
    a("s_branch L_pollml")
    a.lab("L_mlok")
    if OPT["stamps"]:
        a("v_writelane_b32 %s, s%d, 13" % (vr(vST), sSPIN))
    a("v_add_f32 %s, %s, %s" % (vr(vML + 1), vr(vML + 1), vr(vML + 5)))
    a("v_add_f32 %s, %s, %s" % (vr(vML + 9), vr(vML + 9), vr(vML + 13)))
    a("v_add_f32 %s, %s, %s" % (vr(vML + 1), vr(vML + 1), vr(vML + 9)))
    a("ds_write_b64 %s, %s" % (vr(vLW), vr(vML, 2)))
    stamp()
    for p in range(NSLOT):
        d = vDAT + 12 * p
        a("ds_read_b128 %s, %s offset:%d" % (vr(d + 4, 4), vr(vLR), p * 32))
    a("s_waitcnt lgkmcnt(0)")
    for p in range(NSLOT - 1, 0, -1):
        d = vDAT + 12 * p
        a("s_cmp_gt_u32 s%d, %d" % (sCNT, p))
        a("s_cbranch_scc1 L_neutral_done")
        a("v_mov_b32 %s, %s" % (vr(d + 4), f32hex(-1e30)))
        a("v_mov_b32 %s, %s" % (vr(d + 6), f32hex(-1e30)))
        a("v_mov_b32 %s, 0" % vr(d + 5))
        a("v_mov_b32 %s, 0" % vr(d + 7))
    a.lab("L_neutral_done")
    for k in range(2):
        a("v_mov_b32 %s, %s" % (vr(vNM + k), vr(vMR + k)))
    for p in range(0, NSLOT, 2):
        for k in range(2):
            a("v_max3_f32 %s, %s, %s, %s" % (vr(vNM + k), vr(vNM + k), vr(vDAT + 12 * p + 4 + 2 * k),
                                            vr(vDAT + 12 * (p + 1) + 4 + 2 * k)))
    for k in range(2):
        a("v_mul_f32 %s, %s, %s" % (vr(vRL + k), f32hex(-SCALE_LOG2), vr(vNM + k)))
    for k in range(2):
        a("v_fma_f32 %s, %s, s%d, %s" % (vr(vSC + k), vr(vMR + k), sT3, vr(vRL + k)))
    for p in range(NSLOT):
        d = vDAT + 12 * p
        for k in range(2):
            a("v_fma_f32 %s, %s, s%d, %s" % (vr(d + 4 + 2 * k), vr(d + 4 + 2 * k), sT3, vr(vRL + k)))
    for k in range(2):
        a("v_exp_f32 %s, %s" % (vr(vSC + k), vr(vSC + k)))
    for p in range(NSLOT):
        d = vDAT + 12 * p
        for k in range(2):
            a("v_exp_f32 %s, %s" % (vr(d + 4 + 2 * k), vr(d + 4 + 2 * k)))
    for k in range(2):
        a("v_mul_f32 %s, %s, %s" % (vr(vLA + k), vr(vLA + k), vr(vSC + k)))
        a("v_mul_f32 %s, %s, %s" % (vr(vOA + k), vr(vOA + k), vr(vSC + k)))
        a("v_mov_b32 %s, %s" % (vr(vMR + k), vr(vNM + k)))
    for p in range(NSLOT):
        d = vDAT + 12 * p
        for k in range(2):
            a("v_fma_f32 %s, %s, %s, %s" % (vr(vLA + k), vr(d + 4 + 2 * k), vr(d + 5 + 2 * k), vr(vLA + k)))
    for k in range(2):
        a("v_rcp_f32 %s, %s" % (vr(vRL + k), vr(vLA + k)))
    a("s_mov_b32 s%d, s%d" % (SRDO, sOUT))
    a("s_and_b32 s%d, s%d, 0xffff" % (SRDO + 1, sOUT + 1))
    a("s_mov_b32 s%d, 0x10000" % (SRDO + 2))
    a("s_mov_b32 s%d, 0x20000" % (SRDO + 3))
    a("s_lshl_b32 s%d, s%d, 13" % (sB0, sBt))
    a("s_lshl_b32 s%d, s%d, 10" % (sT1, sG))
    a("s_add_u32 s%d, s%d, s%d" % (sB0, sB0, sT1))
    a("s_lshl_b32 s%d, s%d, 6" % (sT1, sQD))
    a("s_add_u32 s%d, s%d, s%d" % (sB0, sB0, sT1))
    a("s_mov_b32 s%d, 0" % sSPIN)
    a("s_cmp_eq_u32 s%d, 0" % sDRY)
    a("s_cselect_b32 s%d, 0x%x, 0" % (sPEND, (1 << NSLOT) - 1))
    for _ in range(OPT.get("odelay", 0)):
        a("s_sleep 8")
    a.lab("L_pollo")
    for p in range(NSLOT):
        d = vDAT + 12 * p
        a("s_bitcmp1_b32 s%d, %d" % (sPEND, p))
        a("s_cbranch_scc0 L_noload%d" % p)
        a("s_lshl_b32 s%d, s%d, 6" % (sT0, sREC + p))
        a("buffer_load_dwordx4 %s, %s, %s, s%d offen sc1" % (vr(d, 4), vr(vOO), sq(SRDW), sT0))
        a.lab("L_noload%d" % p)
    a("s_waitcnt vmcnt(0)")
    for p in range(NSLOT):
        d = vDAT + 12 * p
        a("v_cmp_eq_u64 vcc, %s, %s" % (sp(sNONCE), vr(d + 2, 2)))
        a("s_cmp_eq_u64 vcc, -1")
        a("s_cselect_b32 s%d, 0x%x, -1" % (sT0, 0xffffffff & ~(1 << p)))
        a("s_and_b32 s%d, s%d, s%d" % (sPEND, sPEND, sT0))
    a("s_cmp_eq_u32 s%d, 0" % sPEND)
    a("s_cbranch_scc1 L_ook")
    a("s_add_u32 s%d, s%d, 1" % (sSPIN, sSPIN))
    a("s_cmp_gt_u32 s%d, 0x40000" % sSPIN)
    a("s_cbranch_scc1 L_end")
    a("s_branch L_pollo")
    a.lab("L_ook")
    if OPT["stamps"]:
        a("v_writelane_b32 %s, s%d, 14" % (vr(vST), sSPIN))
    stamp()
    vO2 = vSC
    for k in range(2):
        a("v_mul_f32 %s, %s, %s" % (vr(vO2 + k), vr(vDAT + 12 + 4 + 2 * k), vr(vDAT + 12 + k)))
    for p in range(NSLOT):
        if p == 1:
            continue
        d = vDAT + 12 * p
        acc = vOA if (p & 1) == 0 else vO2
        for k in range(2):
            a("v_fma_f32 %s, %s, %s, %s" % (vr(acc + k), vr(d + 4 + 2 * k), vr(d + k), vr(acc + k)))
    for k in range(2):
        a("v_add_f32 %s, %s, %s" % (vr(vOA + k), vr(vOA + k), vr(vO2 + k)))
    a("s_add_u32 s%d, s%d, %d" % (sKK, sKK, NSLOT))
    a("s_cmp_lt_u32 s%d, s%d" % (sKK, sN))
    a("s_cbranch_scc0 L_final")
    recs()
    a("s_branch L_cbatch")
    a.lab("L_final")
    for k in range(2):
        a("v_mul_f32 %s, %s, %s" % (vr(vOA + k), vr(vOA + k), vr(vRL + k)))
    a("v_cvt_pk_bf16_f32 %s, %s, %s" % (vr(vOA), vr(vOA), vr(vOA + 1)))
    if OPT.get("dry"):
        a("s_cmp_lg_u32 s%d, 0" % sDRY)
        a("s_cbranch_scc1 C_dry_ret")
    a("buffer_store_short %s, %s, %s, s%d offen" % (vr(vOA), vr(vA1), sq(SRDO), sB0))
    a("buffer_store_short_d16_hi %s, %s, %s, s%d offen offset:256" % (vr(vOA), vr(vA1), sq(SRDO), sB0))
    if OPT["stamps"]:
        a("s_waitcnt vmcnt(0)")
        stamp()
        stampout(5)
    a.lab("L_end")
    a("s_endpgm")


def build():
    a = A()
    kernel(a)
    s = HEADER
    s += "; @launch grid=(256,1,1) block=(320,1,1) lds=163840\n"
    s += '.amdgcn_target "amdgcn-amd-amdhsa--gfx950"\n.text\n'
    k = NAME + "_kernel"
    s += ".globl %s\n.p2align 8\n.type %s,@function\n" % (k, k) + a.text()
    s += """.section .rodata,"a"
.p2align 6
.amdhsa_kernel %s
  .amdhsa_next_free_vgpr 256
  .amdhsa_next_free_sgpr 102
  .amdhsa_accum_offset 256
  .amdhsa_group_segment_fixed_size 0
  .amdhsa_kernarg_size 64
  .amdhsa_user_sgpr_count 2
  .amdhsa_user_sgpr_kernarg_segment_ptr 1
  .amdhsa_system_sgpr_workgroup_id_x 1
.end_amdhsa_kernel
""" % k
    return s


if __name__ == "__main__":
    args = sys.argv[1:]
    for x in list(args):
        if x.startswith("--"):
            k = x[2:]
            if k.startswith("odelay="):
                OPT["odelay"] = int(k[7:])
            elif k.startswith("perm="):
                OPT["perm"] = [int(c) for c in k[5:]]
            elif k.startswith("no"):
                OPT[k[2:]] = False
            else:
                OPT[k] = True
            args.remove(x)
    open(args[0] if args else "cdna_kernels/%s.s" % NAME, "w").write(build())
```

```python
import struct
import sys

NAME = "standalone__paged_block_table_kv_radixattention__sampling"

HEADER = """; Kernarg layout for this problem (64 bytes, ptrs only, base s[0:1]):
"""

NPHYS = 1152
KV_BYTES = NPHYS * 32768
WS_STAMP = 512 << 10
WS_O = 1 << 20
WS_ML = 17 << 20
WS_SIZE = 18 << 20
SCALE_LOG2 = 0.08838834764831845 * 1.4426950408889634
PRED_CTX = [4096 - (i * 2654435761) % 1024 for i in range(1, 9)]
PRED_S = 128
NSLOT = 12

OPT = dict(stamps=False, nt=True, prewarm=True)


def f32hex(x):
    return "0x%08x" % struct.unpack("<I", struct.pack("<f", x))[0]


class A:
    def __init__(self):
        self.l = []
        self.nstamp = 0

    def __call__(self, s):
        self.l.append("    " + s)

    def lab(self, s):
        self.l.append(s + ":")

    def c(self, s):
        self.l.append("    ; " + s)

    def text(self):
        return "\n".join(self.l) + "\n"


def vr(a, n=1):
    return "v%d" % a if n == 1 else "v[%d:%d]" % (a, a + n - 1)


def sp(a):
    return "s[%d:%d]" % (a, a + 1)


def sq(a):
    return "s[%d:%d]" % (a, a + 3)


def kernel(a):
    sMODE = 3
    sQ, sK, sV, sBT, sCTX, sOUT, sDBG, sWS = 4, 6, 8, 10, 12, 14, 16, 18
    sNONCE = 6
    sBAD = 8
    sDRY = 3
    sQRD = 9
    SRDK, SRDV, SRDW = 20, 24, 28
    sC = 32
    sB = 40
    sD = 49
    sSTP = 0
    sG, sI, sW, sS, sSH, sNR, sR = 57, 58, 59, 60, 61, 62, 63
    sSOFF = 64
    sJ16 = 72
    sMK = 80
    sT0, sT1, sT2, sT3 = 96, 97, 98, 99
    sWB, sCH = 100, 101
    sU = sB + 8
    vVOFF = 2
    vKA = 6
    vVA = 14
    vPW, vPR = 18, 19
    vCTXH, vCTXR = 20, 21
    vLIM = 22
    vMAX, vNINF = 30, 31
    vQ = 32
    vS = 64
    vKF = 128
    vVF = 160
    vT = 160
    vTMP = 192
    vONE = 208
    vOOFF = 212
    vX, vOFF, vTT, vM32, vJ, vID = 213, 214, 215, 216, 217, 218
    vNMC = 219
    vNON = 220
    vZERO = 222
    vN2 = 228
    vNOFF = 221
    vST = 223
    vACO = 224
    vACL = 240
    t0, t1, t2, t3, t4, t5 = (vTMP + k for k in range(6))
    NT = " nt" if OPT["nt"] else ""

    def stamp(final=False):
        if not OPT["stamps"]:
            return
        if OPT.get("light") and not final:
            a.nstamp += 1
            return
        a("s_memrealtime %s" % sp(sSTP))
        a("s_waitcnt lgkmcnt(0)")
        a("v_writelane_b32 %s, s%d, %d" % (vr(vST), sSTP, a.nstamp))
        a.nstamp += 1

    def chain():
        a("v_mov_b32 %s, 0" % vr(vOFF))
        for b in range(1, 8):
            a("v_cmpx_le_u32 vcc, s%d, %s" % (sB + b, vr(vX)))
            a("v_mov_b32 %s, s%d" % (vr(vOFF), sD + b))
        a("s_mov_b64 exec, -1")
        a("v_add_u32 %s, %s, %s" % (vr(vTT), vr(vX), vr(vOFF)))

    def chunk_index():
        a("s_lshl_b32 s%d, s%d, 5" % (sT0, sR))
        a("s_add_u32 s%d, s%d, s%d" % (sCH, sI, sT0))

    def decode8():
        chunk_index()
        a("s_lshl2_add_u32 s%d, s%d, s%d" % (sT0, sCH, sW))
        a("s_mul_i32 s%d, s%d, s%d" % (sT1, sT0, sU))
        a("s_add_u32 s%d, s%d, s%d" % (sT2, sT1, sU))
        a("s_lshr_b32 s%d, s%d, s%d" % (sT1, sT1, sSH))
        a("s_lshr_b32 s%d, s%d, s%d" % (sT2, sT2, sSH))
        a("v_add_u32 %s, s%d, v1" % (vr(vX), sT1))
        chain()
        a("v_cmp_gt_u32 vcc, s%d, %s" % (sT2, vr(vX)))

    def decode32():
        chunk_index()
        a("s_lshl_b32 s%d, s%d, 2" % (sT0, sCH))
        a("v_lshrrev_b32 %s, 3, v1" % vr(t0))
        a("v_add_u32 %s, s%d, %s" % (vr(t0), sT0, vr(t0)))
        a("v_mul_u32_u24 %s, s%d, %s" % (vr(t0), sU, vr(t0)))
        a("v_add_u32 %s, s%d, %s" % (vr(t1), sU, vr(t0)))
        a("v_lshrrev_b32 %s, s%d, %s" % (vr(t0), sSH, vr(t0)))
        a("v_lshrrev_b32 %s, s%d, %s" % (vr(t1), sSH, vr(t1)))
        a("v_and_b32 %s, 7, v1" % vr(t2))
        a("v_add_u32 %s, %s, %s" % (vr(vX), vr(t0), vr(t2)))
        chain()
        a("v_cmp_gt_u32 vcc, %s, %s" % (vr(t1), vr(vX)))

    def maskinfo():
        a("v_and_b32 %s, 0xff, %s" % (vr(vJ), vr(vTT)))
        a("v_lshlrev_b32 %s, 4, %s" % (vr(vJ), vr(vJ)))
        a("v_lshrrev_b32 %s, 8, %s" % (vr(t1), vr(vTT)))
        a("v_lshlrev_b32 %s, 2, %s" % (vr(t1), vr(t1)))
        a("v_lshlrev_b32_e64 %s, %s, 15" % (vr(vM32), vr(t1)))
        a("v_cmp_gt_u32 %s, s%d, %s" % (sp(sMK), sS, vr(vX)))
        a("v_mov_b32 %s, -1" % vr(t1))
        a("s_nop 0")
        a("v_cndmask_b32 %s, %s, %s, %s" % (vr(vM32), vr(vM32), vr(t1), sp(sMK)))
        a("v_cndmask_b32 %s, 0, %s, vcc" % (vr(vM32), vr(vM32)))

    def ids_to_soff():
        a("v_mov_b32 %s, 0x%x" % (vr(t1), NPHYS))
        a("v_min_u32 %s, 0x%x, %s" % (vr(vID), NPHYS, vr(vID)))
        a("v_cndmask_b32 %s, %s, %s, vcc" % (vr(vID), vr(t1), vr(vID)))
        a("v_lshlrev_b32 %s, 15, %s" % (vr(vID), vr(vID)))

    def partition():
        vTO = vTMP + 8
        a("s_mov_b32 s%d, 0" % sBAD)
        a("s_load_dwordx8 s[%d:%d], %s, 0" % (sC, sC + 7, sp(sCTX)))
        a("v_lshlrev_b32 %s, 4, v1" % vr(vTO))
        a("v_add_u32 %s, 0x1000, %s" % (vr(vTO + 1), vr(vTO)))
        for b in range(8):
            a("global_load_dwordx4 %s, %s, %s offset:%d" % (
                vr(vT + 4 * b, 4), vr(vTO if b < 4 else vTO + 1), sp(sBT), (b & 3) * 1024))
        a("s_waitcnt lgkmcnt(0)")
        for b in range(8):
            a("s_cmp_lt_i32 s%d, 1" % (sC + b))
            a("s_cselect_b32 s%d, 0x1000, s%d" % (sC + b, sC + b))
            a("s_min_i32 s%d, s%d, 0x1000" % (sC + b, sC + b))
            a("s_add_i32 s%d, s%d, 15" % (sC + b, sC + b))
            a("s_lshr_b32 s%d, s%d, 4" % (sC + b, sC + b))
        a("s_max_u32 s%d, s%d, s%d" % (sT0, sC, sC + 1))
        for b in range(2, 8):
            a("s_max_u32 s%d, s%d, s%d" % (sT0, sT0, sC + b))
        a("s_waitcnt vmcnt(0)")
        for c in range(4):
            a("v_sad_u32 %s, %s, %s, 0" % (vr(t0 + c), vr(vT + 4 + c), vr(vT + c)))
        for b in range(2, 8):
            for c in range(4):
                a("v_sad_u32 %s, %s, %s, %s" % (vr(t0 + c), vr(vT + 4 * b + c), vr(vT + c), vr(t0 + c)))
        for c in range(4):
            a("v_cmp_ne_u32 %s, 0, %s" % (sp(sMK + 2 * c), vr(t0 + c)))
        a("s_nop 3")
        for c in range(4):
            a("s_ff1_i32_b64 s%d, %s" % (sJ16 + c, sp(sMK + 2 * c)))
            a("s_lshl2_add_u32 s%d, s%d, %d" % (sJ16 + c, sJ16 + c, c))
        a("s_min_u32 s%d, s%d, s%d" % (sS, sJ16, sJ16 + 1))
        a("s_min_u32 s%d, s%d, s%d" % (sS, sS, sJ16 + 2))
        a("s_min_u32 s%d, s%d, s%d" % (sS, sS, sJ16 + 3))
        a("s_min_u32 s%d, s%d, s%d" % (sS, sS, sT0))
        a("s_mov_b32 s%d, s%d" % (sB, sS))
        for b in range(8):
            a("s_sub_i32 s%d, s%d, s%d" % (sT1, sC + b, sS))
            a("s_max_i32 s%d, s%d, 0" % (sT1, sT1))
            a("s_add_u32 s%d, s%d, s%d" % (sB + b + 1, sB + b, sT1))
            if b >= 1:
                a("s_sub_u32 s%d, s%d, s%d" % (sD + b, sS, sB + b))
                a("s_add_u32 s%d, s%d, %d" % (sD + b, sD + b, 256 * b))
        a("s_cmp_gt_u32 s%d, 1024" % sU)
        a("s_cselect_b32 s%d, 8, 7" % sSH)
        a("s_cselect_b32 s%d, 2, 1" % sNR)
        a("s_mov_b32 s%d, 0" % sR)

    def srd(dst, p, n):
        a("s_mov_b32 s%d, s%d" % (dst, p))
        a("s_and_b32 s%d, s%d, 0xffff" % (dst + 1, p + 1))
        a("s_mov_b32 s%d, 0x%x" % (dst + 2, n))
        a("s_mov_b32 s%d, 0x20000" % (dst + 3))

    def nonce_wait(tag):
        a("s_mov_b32 s%d, 0" % sT3)
        a.lab("L_noncewait" + tag)
        a("v_readfirstlane_b32 s%d, %s" % (sNONCE, vr(vN2)))
        a("v_readfirstlane_b32 s%d, %s" % (sNONCE + 1, vr(vN2 + 1)))
        a("s_nop 1")
        a("s_cmp_lg_u32 s%d, 0" % sNONCE)
        a("s_cbranch_scc1 L_nonceok" + tag)
        a("s_add_u32 s%d, s%d, 1" % (sT3, sT3))
        a("s_cmp_gt_u32 s%d, 0x100000" % sT3)
        a("s_cbranch_scc1 L_nonceok" + tag)
        a("s_sleep 2")
        a("global_load_dwordx2 %s, %s, %s sc1" % (vr(vN2, 2), vr(vNOFF), sp(sDBG)))
        a("s_waitcnt vmcnt(0)")
        a("s_branch L_noncewait" + tag)
        a.lab("L_nonceok" + tag)

    def stampout(nw):
        a("s_mul_i32 s96, s2, 5")
        a("s_add_u32 s96, s96, s%d" % sW)
        a("s_lshl_b32 s96, s96, 6")
        a("s_add_u32 s96, s96, 0x%x" % WS_STAMP)
        a("v_lshlrev_b32 %s, 2, v1" % vr(t0))
        a("s_mov_b64 exec, 0xffff")
        a("buffer_store_dword %s, %s, %s, s96 offen" % (vr(vST), vr(t0), sq(SRDW)))
        a("s_endpgm")

    a.lab(NAME + "_kernel")
    a("s_cmp_ge_u32 s2, 256")
    a("s_cbranch_scc1 L_end")
    a("s_load_dwordx16 s[4:19], s[0:1], 0")
    a("v_and_b32 v1, 63, v0")
    a("v_lshrrev_b32 v2, 6, v0")
    a("s_and_b32 s%d, s2, 7" % sG)
    if OPT.get("perm"):
        packed = 0
        for x, g in enumerate(OPT["perm"]):
            packed |= g << (4 * x)
        a("s_lshl_b32 s%d, s%d, 2" % (sG, sG))
        a("s_lshr_b32 s%d, 0x%x, s%d" % (sG, packed, sG))
        a("s_and_b32 s%d, s%d, 7" % (sG, sG))
    a("s_lshr_b32 s%d, s2, 3" % sI)
    a("v_readfirstlane_b32 s%d, v2" % sW)
    if OPT["stamps"]:
        a("v_mov_b32 %s, 0" % vr(vST))
        a("s_memrealtime %s" % sp(96))
        a("s_waitcnt lgkmcnt(0)")
        a("v_writelane_b32 %s, s96, 0" % vr(vST))
        a.nstamp = 1
    a.c("predicted partition (verified against the real table / lengths below)")
    nb = [(c + 15) // 16 for c in PRED_CTX]
    B = [PRED_S]
    for b in range(8):
        B.append(B[-1] + max(nb[b] - PRED_S, 0))
    a("s_mov_b32 s%d, %d" % (sS, PRED_S))
    for k in range(9):
        a("s_mov_b32 s%d, %d" % (sB + k, B[k]))
    for b in range(1, 8):
        a("s_mov_b32 s%d, %d" % (sD + b, PRED_S - B[b] + 256 * b))
    a("s_mov_b32 s%d, 7" % sSH)
    a("s_mov_b32 s%d, 1" % sNR)
    a("s_mov_b32 s%d, 0" % sR)
    a("s_mov_b32 s%d, 0" % sDRY)
    a("v_mov_b32 %s, 0" % vr(vZERO))
    a("s_cmp_lg_u32 s%d, 4" % sW)
    a("s_cbranch_scc1 C_entry")
    entry_lines = a.l
    a.l = []

    a.lab("C_entry")
    st0 = a.nstamp
    if OPT.get("skipcompute"):
        a("v_mov_b32 %s, 0" % vr(t0))
        a("s_lshl_b32 s%d, s%d, 15" % (sT0, sW))
        a("s_add_u32 s%d, s%d, %d" % (sT0, sT0, 3 * 8192))
        a("v_mov_b32 %s, s%d" % (vr(t1), sT0))
        for k in range(4):
            a("s_barrier")
        a("ds_write_b32 %s, %s" % (vr(t1), vr(t0)))
        a("s_waitcnt lgkmcnt(0)")
        for k in range(4):
            a("s_barrier")
        a("s_endpgm")
    a("s_lshl_b32 s%d, s%d, 15" % (sWB, sW))
    decode8()
    maskinfo()
    vTO, vQO, vCO = vTMP + 8, vTMP + 10, vTMP + 11
    a("v_lshlrev_b32 %s, 4, v1" % vr(vTO))
    a("s_lshl_b32 s%d, s%d, 11" % (sT0, sW))
    a("v_add_u32 %s, s%d, %s" % (vr(vTO), sT0, vr(vTO)))
    a("v_bfe_u32 %s, v1, 2, 3" % vr(t0))
    a("v_lshlrev_b32 %s, 2, %s" % (vr(vCO), vr(t0)))
    a("v_and_b32 %s, 31, v1" % vr(t0))
    a("v_lshrrev_b32 %s, 5, v1" % vr(t1))
    a("v_lshlrev_b32 %s, 4, %s" % (vr(t0), vr(t0)))
    a("v_lshl_add_u32 %s, %s, 12, %s" % (vr(t0), vr(t1), vr(t0)))
    a("s_lshl_b32 s%d, s%d, 9" % (sT1, sW))
    a("v_add_u32 %s, s%d, %s" % (vr(vOOFF), sT1, vr(t0)))
    a("s_waitcnt lgkmcnt(0)")
    stamp()
    a("s_load_dwordx8 s[%d:%d], %s, 0" % (sC, sC + 7, sp(sCTX)))
    a("global_load_dword %s, %s, %s" % (vr(vCTXR), vr(vCO), sp(sCTX)))
    vTS = 236
    for r in range(2):
        a("global_load_dwordx4 %s, %s, %s offset:%d" % (vr(vTS + 4 * r, 4), vr(vTO), sp(sBT), r * 1024))
    srd(SRDW, sWS, WS_SIZE)
    a("s_mov_b32 s%d, 0" % sQRD)
    if OPT["prewarm"]:
        a.c("address-translation warm-up for the record area and the output")
        a("s_lshl_b32 s%d, s%d, 6" % (sT0, sG))
        a("s_add_u32 s%d, s%d, s%d" % (sT0, sT0, sI))
        a("s_lshl_b32 s%d, s%d, 15" % (sT1, sT0))
        a("s_add_u32 s%d, s%d, 0x%x" % (sT1, sT1, WS_O))
        a("s_lshl_b32 s%d, s%d, 11" % (sT2, sT0))
        a("s_add_u32 s%d, s%d, 0x%x" % (sT2, sT2, WS_ML))
        a("buffer_load_dword %s, %s, %s, s%d offen" % (vr(vACO), vr(vZERO), sq(SRDW), sT1))
        a("buffer_load_dword %s, %s, %s, s%d offen" % (vr(vACO + 1), vr(vZERO), sq(SRDW), sT2))
        a("global_load_dword %s, %s, %s" % (vr(vACO + 2), vr(vZERO), sp(sOUT)))
    a.c("nonce: workgroup 0 / wave 0 publishes a per-launch tag in d_debug")
    a("s_or_b32 s%d, s2, s%d" % (sT0, sW))
    a("s_cmp_lg_u32 s%d, 0" % sT0)
    a("s_cbranch_scc1 L_nononce")
    a("s_memrealtime %s" % sp(96))
    a("s_waitcnt lgkmcnt(0)")
    a("s_or_b32 s96, s96, 1")
    a("v_mov_b32 %s, s96" % vr(t0))
    a("v_mov_b32 %s, s97" % vr(t1))
    a("v_lshlrev_b32 %s, 6, v1" % vr(t2))
    a("s_mov_b64 exec, 15")
    a("global_store_dwordx2 %s, %s, %s sc1" % (vr(t2), vr(t0, 2), sp(sDBG)))
    a("s_mov_b64 exec, -1")
    a.lab("L_nononce")
    a("s_and_b32 s%d, s%d, 3" % (sT0, sI))
    a("s_lshl_b32 s%d, s%d, 6" % (sT0, sT0))
    a("v_mov_b32 %s, s%d" % (vr(vNOFF), sT0))
    if OPT.get("dry"):
        a.c("one wave walks the combine code once (no memory access) so that it is in the instruction cache later")
        a("s_cmp_eq_u32 s%d, 3" % sW)
        a("s_cbranch_scc1 LD_dry")
        a.lab("C_dry_ret")
        a("s_mov_b32 s%d, 0" % sDRY)
    a.c("remaining lane constants")
    a("v_and_b32 %s, 31, v1" % vr(t0))
    a("v_lshrrev_b32 %s, 5, v1" % vr(t1))
    a("v_and_b32 %s, 3, v1" % vr(t2))
    a("v_bfe_u32 %s, v1, 2, 2" % vr(vTMP + 6))
    a("v_lshl_or_b32 %s, %s, 2, %s" % (vr(t2), vr(t2), vr(vTMP + 6)))
    a("v_xor_b32 %s, %s, %s" % (vr(t2), vr(t2), vr(t1)))
    a("v_lshlrev_b32 %s, 4, %s" % (vr(t2), vr(t2)))
    a("v_lshl_add_u32 %s, %s, 8, %s" % (vr(t2), vr(t0), vr(t2)))
    a("v_add_u32 %s, s%d, %s" % (vr(vKA), sWB, vr(t2)))
    for s in range(1, 8):
        a("v_xor_b32 %s, %d, %s" % (vr(vKA + s), s << 5, vr(vKA)))
    u0, u1, u2, u3, u4, u5 = (vLIM + k for k in range(6))
    a("v_bfe_u32 %s, v1, 2, 2" % vr(u0))
    a("v_lshrrev_b32 %s, 5, v1" % vr(u1))
    a("v_bfe_u32 %s, v1, 4, 1" % vr(u2))
    a("v_bfe_u32 %s, v1, 1, 1" % vr(u3))
    a("v_lshl_or_b32 %s, %s, 1, %s" % (vr(u2), vr(u2), vr(u3)))
    a("s_lshl_b32 s%d, s%d, 2" % (sT1, sW))
    a("v_or_b32 %s, s%d, %s" % (vr(u2), sT1, vr(u2)))
    for u in range(2):
        a("v_lshl_or_b32 %s, %s, 2, %s" % (vr(u3), vr(u0), vr(u1)))
        if u:
            a("v_or_b32 %s, 2, %s" % (vr(u3), vr(u3)))
        a("v_xor_b32 %s, %s, %s" % (vr(u3), vr(u3), vr(u2)))
        a("v_lshlrev_b32 %s, 4, %s" % (vr(u3), vr(u3)))
        a("v_lshl_add_u32 %s, %s, 2, %s" % (vr(u4), vr(u1), vr(u0)))
        a("v_add_u32 %s, %d, %s" % (vr(u4), 8 * u, vr(u4)))
        a("v_lshl_add_u32 %s, %s, 8, %s" % (vr(u3), vr(u4), vr(u3)))
        a("v_and_b32 %s, 1, v1" % vr(u5))
        a("v_lshl_add_u32 %s, %s, 3, %s" % (vr(vVA + u), vr(u5), vr(u3)))
        a("v_add_u32 %s, 0x10000, %s" % (vr(vVA + 2 + u), vr(vVA + u)))
    a("v_lshlrev_b32 %s, 4, v1" % vr(u0))
    a("v_add_u32 %s, 0x20000, %s" % (vr(vPR), vr(u0)))
    a("s_lshl_b32 s%d, s%d, 13" % (sT1, sW))
    a("v_add_u32 %s, s%d, %s" % (vr(vPW), sT1, vr(vPR)))
    a("v_mov_b32 %s, 0xff800000" % vr(vNINF))
    for k in range(4):
        a("v_mov_b32 %s, 0x3f803f80" % vr(vONE + k))
    a.c("verify the prediction: lengths (scalar) and table rows 2w, 2w+1")
    a("s_waitcnt lgkmcnt(0)")
    a("s_mov_b32 s%d, 0" % sBAD)
    for b in range(8):
        a("s_cmp_lg_u32 s%d, %d" % (sC + b, PRED_CTX[b]))
        a("s_cselect_b32 s%d, 1, s%d" % (sBAD, sBAD))
    a("s_waitcnt vmcnt(%d)" % (3 if OPT["prewarm"] else 0))
    a("v_lshrrev_b32 %s, 5, v1" % vr(u0))
    a("v_lshlrev_b32 %s, 7, %s" % (vr(u0), vr(u0)))
    a("v_lshlrev_b32 %s, 2, v1" % vr(u1))
    a("s_lshl_b32 s%d, s%d, 1" % (sT0, sW))
    a("v_mov_b32 %s, 0" % vr(u3))
    for r in range(2):
        a("v_mad_u32_u24 %s, %s, s%d, %s" % (vr(u2), vr(u0), sT0, vr(u1)))
        for c in range(4):
            a("v_add_u32 %s, %d, %s" % (vr(u4), c, vr(u2)))
            a("v_sad_u32 %s, %s, %s, %s" % (vr(u3), vr(vTS + 4 * r + c), vr(u4), vr(u3)))
        a("s_add_u32 s%d, s%d, 1" % (sT0, sT0))
    a("v_cmp_ne_u32 vcc, 0, %s" % vr(u3))
    a("s_nop 3")
    a("s_cmp_lg_u64 vcc, 0")
    a("s_cselect_b32 s%d, 1, s%d" % (sBAD, sBAD))
    a("s_branch C_body")

    a.lab("C_generic")
    partition()
    a.lab("C_round")
    decode8()
    maskinfo()

    a.lab("C_body")
    a("v_cmp_gt_i32 vcc, 1, %s" % vr(vCTXR))
    a("v_mov_b32 %s, 0x1000" % vr(t0))
    a("v_min_i32 %s, 0x1000, %s" % (vr(t1), vr(vCTXR)))
    a("v_cndmask_b32 %s, %s, %s, vcc" % (vr(t1), vr(t1), vr(t0)))
    a("v_lshrrev_b32 %s, 5, v1" % vr(t2))
    a("v_lshlrev_b32 %s, 2, %s" % (vr(t2), vr(t2)))
    a("v_sub_u32 %s, %s, %s" % (vr(vCTXH), vr(t1), vr(t2)))
    for u in range(8):
        a("v_readlane_b32 s%d, %s, %d" % (sJ16 + u, vr(vJ), u))
        a("v_readlane_b32 s%d, %s, %d" % (sMK + 2 * u, vr(vM32), u))
        a("v_readlane_b32 s%d, %s, %d" % (sMK + 2 * u + 1, vr(vM32), u))
    a("s_nop 1")
    for u in range(8):
        a("v_cndmask_b32 %s, 0, %s, %s" % (vr(vLIM + u), vr(vCTXH), sp(sMK + 2 * u)))
    for u in range(8):
        a("v_subrev_u32 %s, s%d, %s" % (vr(vLIM + u), sJ16 + u, vr(vLIM + u)))
    a("v_mov_b32 %s, %s" % (vr(vMAX), vr(vNINF)))
    a.c("relevance mask of the 8 batches for this chunk, record bases")
    sU0, sU1, sREL, sOB, sMB = sSOFF, sSOFF + 1, sSOFF + 2, sSOFF + 3, sSOFF + 4
    a("s_lshl_b32 s%d, s%d, 2" % (sT0, sCH))
    a("s_mul_i32 s%d, s%d, s%d" % (sU0, sT0, sU))
    a("s_lshl2_add_u32 s%d, s%d, s%d" % (sU1, sU, sU0))
    a("s_lshr_b32 s%d, s%d, s%d" % (sU0, sU0, sSH))
    a("s_lshr_b32 s%d, s%d, s%d" % (sU1, sU1, sSH))
    a("s_mov_b32 s%d, 0" % sREL)
    for b in range(8):
        a("s_cmp_lt_u32 s%d, s%d" % (sU0, sB + b + 1))
        a("s_cselect_b32 s%d, %d, 0" % (sT0, 1 << b))
        a("s_cmp_gt_u32 s%d, s%d" % (sU1, sB + b))
        a("s_cselect_b32 s%d, s%d, 0" % (sT0, sT0))
        a("s_or_b32 s%d, s%d, s%d" % (sREL, sREL, sT0))
    a("s_cmp_lt_u32 s%d, s%d" % (sU0, sS))
    a("s_cselect_b32 s%d, 0xff, s%d" % (sREL, sREL))
    a("s_lshl_b32 s%d, s%d, 6" % (sT0, sG))
    a("s_add_u32 s%d, s%d, s%d" % (sT0, sT0, sCH))
    a("s_lshl_b32 s%d, s%d, 15" % (sOB, sT0))
    a("s_add_u32 s%d, s%d, 0x%x" % (sOB, sOB, WS_O))
    a("s_lshl_b32 s%d, s%d, 11" % (sMB, sT0))
    a("s_add_u32 s%d, s%d, 0x%x" % (sMB, sMB, WS_ML))
    a("s_lshl_b32 s%d, s%d, 6" % (sT0, sW))
    a("s_add_u32 s%d, s%d, s%d" % (sMB, sMB, sT0))

    a.c("S phase")
    for t in range(4):
        a("s_barrier")
        stamp()
        if t == 0:
            a.c("Q fragments from the staged copy (first pass only); zero Q of empty-context batches")
            a("s_cmp_lg_u32 s%d, 0" % sQRD)
            a("s_cbranch_scc1 L_qdone")
            a("s_mov_b32 s%d, 1" % sQRD)
            a("s_sub_u32 s%d, 0x20000, s%d" % (sT0, sWB))
            for s in range(8):
                a("v_add_u32 %s, s%d, %s" % (vr(vVF + s), sT0, vr(vKA + s)))
            for s in range(8):
                a("ds_read_b128 %s, %s" % (vr(vQ + 4 * s, 4), vr(vVF + s)))
            a("v_cmp_lt_i32 vcc, 0, %s" % vr(vCTXR))
            a("s_waitcnt lgkmcnt(0)")
            for k in range(32):
                a("v_cndmask_b32 %s, 0, %s, vcc" % (vr(vQ + k), vr(vQ + k)))
            a.lab("L_qdone")
        for s in range(8):
            a("ds_read_b128 %s, %s offset:%d" % (vr(vKF + 4 * s, 4), vr(vKA + s), t * 8192))
        for s in range(8):
            a("s_waitcnt lgkmcnt(%d)" % (7 - s))
            a("v_mfma_f32_32x32x16_bf16 %s, %s, %s, %s" % (
                vr(vS + 16 * t, 16), vr(vKF + 4 * s, 4), vr(vQ + 4 * s, 4),
                "0" if s == 0 else vr(vS + 16 * t, 16)))
        if t == 1:
            a("s_cmp_lg_u32 s%d, 0" % sW)
            a("s_cbranch_scc1 L_nonld")
            a("global_load_dwordx2 %s, %s, %s sc1" % (vr(vN2, 2), vr(vNOFF), sp(sDBG)))
            a.lab("L_nonld")
        a("s_nop 3")
        for half in range(2):
            u = 2 * t + half
            for r8 in range(8):
                const = 8 * ((r8 >> 2) & 1) + (r8 & 3)
                a("v_cmp_lt_i32 %s, %d, %s" % (sp(sMK + 2 * r8), const, vr(vLIM + u)))
            for r8 in range(8):
                r = vS + 16 * t + 8 * half + r8
                a("v_cndmask_b32 %s, %s, %s, %s" % (vr(r), vr(vNINF), vr(r), sp(sMK + 2 * r8)))
            for r8 in range(0, 8, 2):
                r = vS + 16 * t + 8 * half + r8
                a("v_max3_f32 %s, %s, %s, %s" % (vr(vMAX), vr(vMAX), vr(r), vr(r + 1)))
    a.c("max exchange: every wave writes {max[32], flag[32]} into the P area of every compute wave")
    a("s_cmp_lg_u32 s%d, 0" % sW)
    a("s_cbranch_scc1 L_nonw0")
    a("s_waitcnt vmcnt(0)")
    nonce_wait("C")
    a.lab("L_nonw0")
    a("v_mov_b32 %s, %s" % (vr(t0), vr(vMAX)))
    a("s_nop 1")
    a("v_permlane32_swap_b32 %s, %s" % (vr(vMAX), vr(t0)))
    a("v_mov_b32 %s, s%d" % (vr(t1), sBAD))
    a("v_cmp_gt_u32 vcc, 32, v1")
    a("v_max_f32 %s, %s, %s" % (vr(vMAX), vr(vMAX), vr(t0)))
    a("v_lshlrev_b32 %s, 2, v1" % vr(t2))
    a("v_cndmask_b32 %s, %s, %s, vcc" % (vr(t3), vr(t1), vr(vMAX)))
    a("v_writelane_b32 %s, s%d, 62" % (vr(t3), sNONCE))
    a("v_writelane_b32 %s, s%d, 63" % (vr(t3), sNONCE + 1))
    a("v_writelane_b32 %s, s%d, 2" % (vr(t1), sNONCE))
    a("v_writelane_b32 %s, s%d, 3" % (vr(t1), sNONCE + 1))
    a("s_lshl_b32 s%d, s%d, 8" % (sT0, sW))
    a("s_add_u32 s%d, s%d, 0x20000" % (sT0, sT0))
    a("v_add_u32 %s, s%d, %s" % (vr(t2), sT0, vr(t2)))
    for w in range(4):
        a("ds_write_b32 %s, %s offset:%d" % (vr(t2), vr(t3), w * 8192))
    a("s_add_u32 s%d, s%d, %d" % (sT0, sWB, 3 * 8192))
    a("v_lshlrev_b32 %s, 2, v1" % vr(t2))
    a("v_add_u32 %s, s%d, %s" % (vr(t2), sT0, vr(t2)))
    a("ds_write_b32 %s, %s" % (vr(t2), vr(t1)))
    a("v_and_b32 %s, 31, v1" % vr(t3))
    a("v_lshlrev_b32 %s, 2, %s" % (vr(t3), vr(t3)))
    a("s_lshl_b32 s%d, s%d, 13" % (sT0, sW))
    a("s_add_u32 s%d, s%d, 0x20000" % (sT0, sT0))
    a("v_add_u32 %s, s%d, %s" % (vr(t3), sT0, vr(t3)))
    a("s_waitcnt lgkmcnt(0)")
    a("s_barrier")
    stamp()
    X = vKF
    for w in range(4):
        a("ds_read2_b32 %s, %s offset0:%d offset1:%d" % (vr(X + 2 * w, 2), vr(t3), w * 64, w * 64 + 32))
    a("v_mov_b32 %s, s%d" % (vr(t4), sT0))
    a("ds_read_b64 %s, %s offset:248" % (vr(X + 8, 2), vr(t4)))
    a("s_waitcnt lgkmcnt(0)")
    a("v_readfirstlane_b32 s%d, %s" % (sNONCE, vr(X + 8)))
    a("v_readfirstlane_b32 s%d, %s" % (sNONCE + 1, vr(X + 9)))
    a("v_or3_b32 %s, %s, %s, %s" % (vr(t0), vr(X + 1), vr(X + 3), vr(X + 5)))
    a("v_or_b32 %s, %s, %s" % (vr(t0), vr(t0), vr(X + 7)))
    a("v_max3_f32 %s, %s, %s, %s" % (vr(vMAX), vr(X), vr(X + 2), vr(X + 4)))
    a("v_readfirstlane_b32 s%d, %s" % (sT0, vr(t0)))
    a("v_mov_b32 %s, %s" % (vr(t0), f32hex(-1e30)))
    a("v_max3_f32 %s, %s, %s, %s" % (vr(vMAX), vr(vMAX), vr(X + 6), vr(t0)))
    a("s_nop 1")
    a("s_cmp_lg_u32 s%d, 0" % sT0)
    a("s_cbranch_scc1 C_fallback")
    a("s_mov_b32 s%d, %s" % (sT0, f32hex(SCALE_LOG2)))
    a("v_mul_f32 %s, %s, %s" % (vr(vNMC), f32hex(-SCALE_LOG2), vr(vMAX)))
    a.c("P phase (+ row sums of this wave's P through a ones-MFMA)")
    GA, GB = vTMP + 8, vTMP + 12
    for u in range(8):
        base = vS + 8 * u
        for k in range(8):
            a("v_fma_f32 %s, %s, s%d, %s" % (vr(base + k), vr(base + k), sT0, vr(vNMC)))
        for k in range(8):
            a("v_exp_f32 %s, %s" % (vr(base + k), vr(base + k)))
        pk = vTMP + 4 * (u & 1)
        for k in range(4):
            a("v_cvt_pk_bf16_f32 %s, %s, %s" % (vr(pk + k), vr(base + 2 * k), vr(base + 2 * k + 1)))
        a("ds_write_b128 %s, %s offset:%d" % (vr(vPW), vr(pk, 4), u * 1024))
        a("s_nop 0")
        a("v_mfma_f32_32x32x16_bf16 %s, %s, %s, %s" % (
            vr(vACL, 16), vr(vONE, 4), vr(pk, 4), "0" if u == 0 else vr(vACL, 16)))
    a("s_waitcnt vmcnt(0)")
    for q in (GA, GB):
        a("v_mov_b32 %s, s%d" % (vr(q + 2), sNONCE))
        a("v_mov_b32 %s, s%d" % (vr(q + 3), sNONCE + 1))
    a("v_bfe_u32 %s, v1, 2, 3" % vr(t4))
    a("v_lshrrev_b32_e64 %s, %s, s%d" % (vr(t5), vr(t4), sREL))
    a("v_and_b32 %s, 1, %s" % (vr(t5), vr(t5)))
    a("v_cmp_eq_u32 vcc, 1, %s" % vr(t5))
    a("v_lshlrev_b32 %s, 8, %s" % (vr(t4), vr(t4)))
    a("v_and_b32 %s, 3, v1" % vr(t5))
    a("v_lshl_add_u32 %s, %s, 4, %s" % (vr(t4), vr(t5), vr(t4)))
    a("v_mov_b32 %s, %s" % (vr(GA), vr(vMAX)))
    a("v_mov_b32 %s, %s" % (vr(GA + 1), vr(vACL)))
    a("s_and_b32 exec_lo, vcc_lo, -1")
    a("s_mov_b32 exec_hi, 0")
    a("s_cbranch_execz L_noml2")
    a("buffer_store_dwordx4 %s, %s, %s, s%d offen sc1" % (vr(GA, 4), vr(t4), sq(SRDW), sMB))
    a.lab("L_noml2")
    a("s_mov_b64 exec, -1")
    a("s_waitcnt lgkmcnt(0)")
    a("s_barrier")
    stamp()
    a.c("PV phase")
    PF = lambda k: vS + 4 * (k & 15)
    VF = lambda k: vKF + 4 * (k & 15)

    def rd_p(t, k8):
        w, s_ = k8 >> 1, k8 & 1
        a("ds_read_b128 %s, %s offset:%d" % (vr(PF(8 * t + k8), 4), vr(vPR), (w * 8 + 2 * t + s_) * 1024))

    def rd_v(t, k8):
        w, s_ = k8 >> 1, k8 & 1
        for u in range(2):
            a("ds_read_b64_tr_b16 %s, %s offset:%d" % (
                vr(VF(8 * t + k8) + 2 * u, 2), vr(vVA + 2 * (w >> 1) + u),
                (w & 1) * 32768 + t * 8192 + s_ * 4096))

    def mf_l(t, k8):
        a("v_mfma_f32_32x32x16_bf16 %s, %s, %s, %s" % (
            vr(vACL, 16), vr(vONE, 4), vr(PF(8 * t + k8), 4),
            "0" if (t == 0 and k8 == 0) else vr(vACL, 16)))

    def mf_o(t, k8):
        a("v_mfma_f32_32x32x16_bf16 %s, %s, %s, %s" % (
            vr(vACO, 16), vr(PF(8 * t + k8), 4), vr(VF(8 * t + k8), 4),
            "0" if (t == 0 and k8 == 0) else vr(vACO, 16)))

    for k in range(8):
        rd_p(0, k)
    for t in range(4):
        if t >= 1:
            a("s_barrier")
            if t >= 2:
                stamp()
        for k in range(8):
            rd_v(t, k)
        if t < 3:
            pass
        for k in range(8):
            a("s_waitcnt lgkmcnt(%d)" % (14 - 2 * k))
            mf_o(t, k)
        if t < 3:
            for k in range(8):
                rd_p(t + 1, k)
    a("s_nop 8")
    a.c("publish O")
    for gq in range(4):
        a("s_bfe_i32 exec_lo, s%d, 0x%x" % (sREL, 0x10000 | (2 * gq)))
        a("s_bfe_i32 exec_hi, s%d, 0x%x" % (sREL, 0x10000 | (2 * gq + 1)))
        a("s_add_u32 s%d, s%d, %d" % (sT2, sOB, gq * 8192))
        a("s_cbranch_execz L_skipo%d" % gq)
        a("v_mov_b32 %s, %s" % (vr(GA), vr(vACO + 4 * gq)))
        a("v_mov_b32 %s, %s" % (vr(GA + 1), vr(vACO + 4 * gq + 1)))
        a("v_mov_b32 %s, %s" % (vr(GB), vr(vACO + 4 * gq + 2)))
        a("v_mov_b32 %s, %s" % (vr(GB + 1), vr(vACO + 4 * gq + 3)))
        a("buffer_store_dwordx4 %s, %s, %s, s%d offen sc1" % (vr(GA, 4), vr(vOOFF), sq(SRDW), sT2))
        a("buffer_store_dwordx4 %s, %s, %s, s%d offen offset:2048 sc1" % (vr(GB, 4), vr(vOOFF), sq(SRDW), sT2))
        a("s_nop 1")
        a.lab("L_skipo%d" % gq)
    a("s_mov_b64 exec, -1")
    stamp(True)
    a("s_add_u32 s%d, s%d, 1" % (sR, sR))
    a("s_cmp_ge_u32 s%d, s%d" % (sR, sNR))
    if OPT["stamps"]:
        a("s_cbranch_scc1 C_stampout")
    else:
        a("s_cbranch_scc1 L_end")
    a("s_waitcnt vmcnt(0)")
    a("s_barrier")
    a("s_branch C_round")
    a.lab("C_fallback")
    a("s_waitcnt vmcnt(0) lgkmcnt(0)")
    a("s_barrier")
    a("s_branch C_generic")
    if OPT["stamps"]:
        a.lab("C_stampout")
        stampout(5)

    compute_lines = a.l
    a.l = []
    a.lab("LD_entry")
    a.nstamp = st0
    if OPT.get("prio"):
        a("s_setprio 3")
    a("v_lshrrev_b32 %s, 4, v1" % vr(t0))
    a("v_and_b32 %s, 15, v1" % vr(t1))
    a("s_lshl_b32 s%d, s%d, 8" % (sT0, sG))
    for p in range(4):
        a("v_lshl_or_b32 %s, %s, 2, %d" % (vr(t2), vr(t0), p))
        a("v_xor_b32 %s, %s, %s" % (vr(t2), vr(t2), vr(t1)))
        a("v_lshlrev_b32 %s, 4, %s" % (vr(t2), vr(t2)))
        a("v_lshl_add_u32 %s, %s, 11, %s" % (vr(t2), vr(t0), vr(t2)))
        a("v_add_u32 %s, %d, %s" % (vr(t2), p * 8192 - 1024 * p, vr(t2)))
        a("v_add_u32 %s, s%d, %s" % (vr(vVOFF + p), sT0, vr(t2)))
    decode32()
    a("v_lshrrev_b32 %s, 8, %s" % (vr(t0), vr(vTT)))
    a("v_and_b32 %s, 0xff, %s" % (vr(vID), vr(vTT)))
    a("v_lshl_add_u32 %s, %s, 7, %s" % (vr(vID), vr(t0), vr(vID)))
    ids_to_soff()
    vQV = 32
    a("v_lshrrev_b32 %s, 4, v1" % vr(t0))
    a("v_and_b32 %s, 15, v1" % vr(t1))
    for p in range(4):
        a("v_lshl_or_b32 %s, %s, 2, %d" % (vr(t2), vr(t0), p))
        a("v_xor_b32 %s, %s, %s" % (vr(t2), vr(t2), vr(t1)))
        a("v_lshlrev_b32 %s, 4, %s" % (vr(t2), vr(t2)))
        a("v_lshl_add_u32 %s, %s, 8, %s" % (vr(vQV + p), vr(t0), vr(t2)))
    a("s_waitcnt lgkmcnt(0)")
    stamp()
    srd(SRDW, sQ, 65536)
    a("s_lshl_b32 s%d, s%d, 10" % (sT0, sG))
    for b in range(8):
        a("s_mov_b32 m0, %d" % (0x20000 + b * 1024))
        a("s_add_u32 s%d, s%d, %d" % (sT1, sT0, b * 8192))
        a("buffer_load_dwordx4 %s, %s, s%d offen lds" % (vr(vQV + (b & 3)), sq(SRDW), sT1))
    srd(SRDK, sK, KV_BYTES)
    srd(SRDV, sV, KV_BYTES)
    srd(SRDW, sWS, WS_SIZE)
    main_lines = a.l
    a.l = []
    a.lab("LD_generic")
    partition()
    a.lab("LD_round")
    decode32()
    a("v_lshlrev_b32 %s, 2, %s" % (vr(t0), vr(vTT)))
    a("s_nop 0")
    a("v_cndmask_b32 %s, 0, %s, vcc" % (vr(t0), vr(t0)))
    a("global_load_dword %s, %s, %s" % (vr(vID), vr(t0), sp(sBT)))
    a("s_waitcnt vmcnt(0)")
    ids_to_soff()
    a("s_nop 1")
    a("s_branch LD_issue")
    ldgen_lines = a.l
    a.l = main_lines
    a.lab("LD_issue")

    def rnd(r, waves=(0, 1, 2, 3)):
        srdx = SRDK if r < 4 else SRDV
        rr = r & 3
        base = sSOFF if (r & 1) == 0 else sJ16
        for wv in waves:
            for s in range(2):
                a("v_readlane_b32 s%d, %s, %d" % (base + 2 * wv + s, vr(vID), 8 * wv + 2 * rr + s))
        if len(waves) < 4:
            a("s_nop 1")
        for wv in waves:
            for s in range(2):
                a("s_mov_b32 m0, %d" % (wv * 32768 + (2 * rr + s) * 4096))
                a("s_nop 0")
                for p in range(4):
                    a("buffer_load_dwordx4 %s, %s, s%d offen offset:%d%s lds" % (
                        vr(vVOFF + p), sq(srdx), base + 2 * wv + s, 1024 * p, NT))

    rnd(0)
    rnd(1)
    rnd(2)
    a("s_waitcnt vmcnt(62)")
    stamp()
    a("s_barrier")
    rnd(3)
    a("s_waitcnt vmcnt(62)")
    stamp()
    a("s_barrier")
    rnd(4)
    a("s_waitcnt vmcnt(62)")
    stamp()
    a("s_barrier")
    rnd(5)
    a("s_waitcnt vmcnt(62)")
    stamp()
    a("s_barrier")
    rnd(6, (0, 1))
    stamp()
    a("s_barrier")
    a("v_mov_b32 %s, %d" % (vr(t0), 3 * 8192))
    a("v_mov_b32 %s, %d" % (vr(t1), 3 * 8192 + 65536))
    a("ds_read_b32 %s, %s" % (vr(t2), vr(t0)))
    a("ds_read_b32 %s, %s offset:32768" % (vr(t3), vr(t0)))
    a("ds_read_b32 %s, %s" % (vr(t4), vr(t1)))
    a("ds_read_b32 %s, %s offset:32768" % (vr(t5), vr(t1)))
    a("ds_read_b64 %s, %s offset:8" % (vr(vNON, 2), vr(t0)))
    a("s_waitcnt lgkmcnt(0)")
    a("v_readfirstlane_b32 s%d, %s" % (sNONCE, vr(vNON)))
    a("v_readfirstlane_b32 s%d, %s" % (sNONCE + 1, vr(vNON + 1)))
    a("v_or3_b32 %s, %s, %s, %s" % (vr(t2), vr(t2), vr(t3), vr(t4)))
    a("v_or_b32 %s, %s, %s" % (vr(t2), vr(t2), vr(t5)))
    a("s_nop 0")
    a("v_readfirstlane_b32 s%d, %s" % (sT0, vr(t2)))
    a("s_nop 1")
    a("s_cmp_lg_u32 s%d, 0" % sT0)
    a("s_cbranch_scc1 LD_fallback")
    rnd(6, (2, 3))
    a("s_waitcnt vmcnt(62)")
    stamp()
    a("s_barrier")
    rnd(7)
    a("s_waitcnt vmcnt(62)")
    a("s_barrier")
    sBt, sQD, sN1, sA2, sN, sKK, sB0, sB1, sGB, sSPIN, sCNT, sPEND = 64, 65, 66, 67, 68, 69, 70, 71, 72, 73, 74, 75
    sM = 76
    sREC = 80
    SRDO = 20
    vCST, vOO, vMO = 6, 7, 8
    vMR, vLA, vOA, vNM, vSC, vRL = 10, 12, 14, 16, 18, 232
    vA0, vA1 = 22, 23
    vML = 240
    vLW, vLR, vSL, vSN = 228, 229, 230, 231
    vDAT = 64
    a("s_lshr_b32 s%d, s%d, 2" % (sBt, sI))
    a("s_and_b32 s%d, s%d, 3" % (sQD, sI))
    a("s_mov_b32 s%d, s%d" % (sB0, sB))
    a("s_mov_b32 s%d, s%d" % (sB1, sB + 1))
    for b in range(1, 8):
        a("s_cmp_eq_u32 s%d, %d" % (sBt, b))
        a("s_cselect_b32 s%d, s%d, s%d" % (sB0, sB + b, sB0))
        a("s_cselect_b32 s%d, s%d, s%d" % (sB1, sB + b + 1, sB1))
    a("v_lshlrev_b32 %s, 2, v1" % vr(vCST))
    a("v_mul_lo_u32 %s, %s, s%d" % (vr(vCST), vr(vCST), sU))
    a("v_lshrrev_b32 %s, s%d, %s" % (vr(vCST), sSH, vr(vCST)))
    a("s_sub_u32 s%d, s%d, 2" % (sT0, sSH))
    a("s_lshl_b32 s%d, 1, s%d" % (sT0, sT0))
    a("v_cmp_gt_u32 %s, s%d, v1" % (sp(sM), sT0))
    a("v_cmp_gt_u32 vcc, s%d, %s" % (sS, vr(vCST)))
    a("s_and_b64 vcc, vcc, %s" % sp(sM))
    a("s_bcnt1_i32_b64 s%d, vcc" % sN1)
    a("v_cmp_ge_u32 vcc, s%d, %s" % (sB0, vr(vCST)))
    a("s_and_b64 vcc, vcc, %s" % sp(sM))
    a("s_bcnt1_i32_b64 s%d, vcc" % sA2)
    a("s_sub_u32 s%d, s%d, 1" % (sA2, sA2))
    a("s_max_u32 s%d, s%d, s%d" % (sA2, sA2, sN1))
    a("v_cmp_gt_u32 vcc, s%d, %s" % (sB1, vr(vCST)))
    a("s_and_b64 vcc, vcc, %s" % sp(sM))
    a("s_bcnt1_i32_b64 s%d, vcc" % sT1)
    a("s_sub_i32 s%d, s%d, s%d" % (sT1, sT1, sA2))
    a("s_max_i32 s%d, s%d, 0" % (sT1, sT1))
    a("s_cmp_gt_u32 s%d, s%d" % (sB1, sB0))
    a("s_cselect_b32 s%d, s%d, 0" % (sT1, sT1))
    a("s_add_u32 s%d, s%d, s%d" % (sN, sN1, sT1))
    a("s_sub_u32 s%d, s%d, s%d" % (sA2, sA2, sN1))
    a("s_lshl_b32 s%d, s%d, 6" % (sGB, sG))
    a("v_and_b32 %s, 31, v1" % vr(vA0))
    a("v_lshrrev_b32 %s, 5, v1" % vr(vA1))
    a("v_lshlrev_b32 %s, 4, %s" % (vr(vOO), vr(vA0)))
    a("v_lshl_add_u32 %s, %s, 11, %s" % (vr(vOO), vr(vA1), vr(vOO)))
    a("s_lshl_b32 s%d, s%d, 9" % (sT0, sQD))
    a("s_lshl_b32 s%d, s%d, 12" % (sT1, sBt))
    a("s_add_u32 s%d, s%d, s%d" % (sT0, sT0, sT1))
    a("s_add_u32 s%d, s%d, 0x%x" % (sT0, sT0, WS_O))
    a("v_add_u32 %s, s%d, %s" % (vr(vOO), sT0, vr(vOO)))
    a("v_lshlrev_b32 %s, 3, v1" % vr(vLW))
    a("v_lshlrev_b32 %s, 4, %s" % (vr(vLR), vr(vA1)))
    a("v_lshrrev_b32 %s, 2, v1" % vr(vSL))
    for k in range(2):
        a("v_mov_b32 %s, %s" % (vr(vMR + k), f32hex(-1e30)))
        a("v_mov_b32 %s, 0" % vr(vLA + k))
        a("v_mov_b32 %s, 0" % vr(vOA + k))
    a("s_mov_b32 s%d, 0" % sKK)

    def recs():
        a("s_sub_u32 s%d, s%d, s%d" % (sCNT, sN, sKK))
        for p in range(NSLOT):
            a("s_add_u32 s%d, s%d, %d" % (sT0, sKK, p))
            a("s_cmp_gt_u32 s%d, %d" % (sCNT, p))
            a("s_cselect_b32 s%d, s%d, s%d" % (sT0, sT0, sKK))
            a("s_add_u32 s%d, s%d, s%d" % (sT1, sT0, sA2))
            a("s_cmp_lt_u32 s%d, s%d" % (sT0, sN1))
            a("s_cselect_b32 s%d, s%d, s%d" % (sT0, sT0, sT1))
            a("s_add_u32 s%d, s%d, s%d" % (sT0, sT0, sGB))
            a("s_lshl_b32 s%d, s%d, 9" % (sREC + p, sT0))
        a("v_add_u32 %s, s%d, %s" % (vr(vML), sKK, vr(vSL)))
        a("v_mov_b32 %s, s%d" % (vr(vML + 1), sKK))
        a("v_cmp_gt_u32 vcc, s%d, %s" % (sCNT, vr(vSL)))
        a("v_cmp_gt_u32 %s, %d, %s" % (sp(sM), NSLOT, vr(vSL)))
        a("s_and_b64 vcc, vcc, %s" % sp(sM))
        a("s_nop 1")
        a("v_cndmask_b32 %s, %s, %s, vcc" % (vr(vML), vr(vML + 1), vr(vML)))
        a("v_add_u32 %s, s%d, %s" % (vr(vML + 1), sA2, vr(vML)))
        a("v_cmp_gt_u32 vcc, s%d, %s" % (sN1, vr(vML)))
        a("s_nop 1")
        a("v_cndmask_b32 %s, %s, %s, vcc" % (vr(vML), vr(vML + 1), vr(vML)))
        a("v_add_u32 %s, s%d, %s" % (vr(vML), sGB, vr(vML)))
        a("v_lshlrev_b32 %s, 11, %s" % (vr(vML), vr(vML)))
        a("v_and_b32 %s, 3, v1" % vr(vML + 1))
        a("v_lshl_add_u32 %s, %s, 4, %s" % (vr(vML), vr(vML + 1), vr(vML)))
        a("s_lshl_b32 s%d, s%d, 8" % (sT0, sBt))
        a("s_add_u32 s%d, s%d, 0x%x" % (sT0, sT0, WS_ML))
        a("v_add_u32 %s, s%d, %s" % (vr(vMO), sT0, vr(vML)))
        a("v_add_u32 %s, s%d, v1" % (vr(vML), sKK))
        a("v_mov_b32 %s, s%d" % (vr(vML + 1), sKK))
        a("v_cmp_gt_u32 vcc, s%d, v1" % sCNT)
        a("v_cmp_gt_u32 %s, %d, v1" % (sp(sM), NSLOT))
        a("s_and_b64 vcc, vcc, %s" % sp(sM))
        a("s_nop 1")
        a("v_cndmask_b32 %s, %s, %s, vcc" % (vr(vML), vr(vML + 1), vr(vML)))
        a("v_add_u32 %s, s%d, %s" % (vr(vML + 1), sA2, vr(vML)))
        a("v_cmp_gt_u32 vcc, s%d, %s" % (sN1, vr(vML)))
        a("s_nop 1")
        a("v_cndmask_b32 %s, %s, %s, vcc" % (vr(vML), vr(vML + 1), vr(vML)))
        a("v_add_u32 %s, s%d, %s" % (vr(vML), sGB, vr(vML)))
        a("v_lshlrev_b32 %s, 15, %s" % (vr(vML), vr(vML)))
        a("s_lshl_b32 s%d, s%d, 9" % (sT0, sQD))
        a("s_lshl_b32 s%d, s%d, 12" % (sT1, sBt))
        a("s_add_u32 s%d, s%d, s%d" % (sT0, sT0, sT1))
        a("s_add_u32 s%d, s%d, 0x%x" % (sT0, sT0, WS_O + 2048 + 31 * 16))
        a("v_add_u32 %s, s%d, %s" % (vr(vSN), sT0, vr(vML)))
    recs()
    a("v_lshlrev_b32 %s, 9, %s" % (vr(vA1), vr(vA1)))
    a("v_lshl_add_u32 %s, %s, 1, %s" % (vr(vA1), vr(vA0), vr(vA1)))
    a("s_waitcnt vmcnt(32)")
    stamp()
    a("s_barrier")

    def ml_loads():
        for w in range(4):
            a("buffer_load_dwordx4 %s, %s, %s, 0 offen offset:%d sc1" % (vr(vML + 4 * w, 4), vr(vMO), sq(SRDW), 64 * w))
    ml_loads()
    a("s_waitcnt vmcnt(4)")
    stamp(True)
    a("s_barrier")
    a("s_waitcnt vmcnt(0)")
    a("s_add_u32 s%d, s%d, 1" % (sR, sR))
    a("s_cmp_ge_u32 s%d, s%d" % (sR, sNR))
    if OPT.get("skipcompute"):
        a("s_memrealtime %s" % sp(sSTP))
        a("s_waitcnt lgkmcnt(0)")
        a("v_writelane_b32 %s, s%d, 12" % (vr(vST), sSTP))
        stampout(5)
    a("s_cbranch_scc1 LD_combine")
    a("s_barrier")
    a("s_branch LD_round")
    a.lab("LD_fallback")
    a("s_waitcnt vmcnt(0) lgkmcnt(0)")
    a("s_barrier")
    a("s_branch LD_generic")

    if OPT.get("dry"):
        a.lab("LD_dry")
        a("s_mov_b32 s%d, 1" % sDRY)
        a("s_mov_b32 s74, %d" % NSLOT)
        a("s_mov_b32 s68, %d" % NSLOT)
        a("s_mov_b32 s69, 0")
        a("s_mov_b32 s64, 0")
        a("s_mov_b32 s65, 0")
        a("s_mov_b32 s99, %s" % f32hex(SCALE_LOG2))
        a("v_lshlrev_b32 v228, 3, v1")
        a("v_add_u32 v228, 0x24000, v228")
        a("v_mov_b32 v229, 0x24000")
        a("v_mov_b32 v7, 0")
        a("v_mov_b32 v23, 0")
        a("s_branch L_mlok")
    a.lab("LD_combine")
    if OPT["stamps"] and not OPT.get("light"):
        a("s_memrealtime %s" % sp(sSTP))
        a("s_waitcnt lgkmcnt(0)")
        a("v_writelane_b32 %s, s%d, 15" % (vr(vST), sSTP))
    a("s_mov_b32 s%d, %s" % (sT3, f32hex(SCALE_LOG2)))
    a("s_mov_b32 s%d, 0" % sSPIN)
    a("s_branch L_chkml")
    a.lab("L_cbatch")
    a("s_mov_b32 s%d, 0" % sSPIN)
    a.lab("L_pollml")
    ml_loads()
    a("s_waitcnt vmcnt(0)")
    a.lab("L_chkml")
    a("v_cmp_eq_u64 vcc, %s, %s" % (sp(sNONCE), vr(vML + 2, 2)))
    for w in range(1, 4):
        a("v_cmp_eq_u64 %s, %s, %s" % (sp(sM), sp(sNONCE), vr(vML + 4 * w + 2, 2)))
        a("s_and_b64 vcc, vcc, %s" % sp(sM))
    a("s_or_b32 vcc_hi, vcc_hi, 0x%x" % (0xffffffff & ~((1 << (4 * NSLOT - 32)) - 1)))
    a("s_cmp_eq_u64 vcc, -1")
    a("s_cbranch_scc1 L_mlok")
    a("s_add_u32 s%d, s%d, 1" % (sSPIN, sSPIN))
    a("s_cmp_gt_u32 s%d, 0x40000" % sSPIN)
    a("s_cbranch_scc1 L_end")
    a("s_branch L_pollml")
    a.lab("L_mlok")
    if OPT["stamps"] and not OPT.get("light"):
        a("v_writelane_b32 %s, s%d, 13" % (vr(vST), sSPIN))
    a("v_add_f32 %s, %s, %s" % (vr(vML + 1), vr(vML + 1), vr(vML + 5)))
    a("v_add_f32 %s, %s, %s" % (vr(vML + 9), vr(vML + 9), vr(vML + 13)))
    a("v_add_f32 %s, %s, %s" % (vr(vML + 1), vr(vML + 1), vr(vML + 9)))
    a("ds_write_b64 %s, %s" % (vr(vLW), vr(vML, 2)))
    stamp()
    for p in range(NSLOT):
        d = vDAT + 12 * p
        a("ds_read_b128 %s, %s offset:%d" % (vr(d + 4, 4), vr(vLR), p * 32))
    a("s_waitcnt lgkmcnt(0)")
    for p in range(NSLOT - 1, 0, -1):
        d = vDAT + 12 * p
        a("s_cmp_gt_u32 s%d, %d" % (sCNT, p))
        a("s_cbranch_scc1 L_neutral_done")
        a("v_mov_b32 %s, %s" % (vr(d + 4), f32hex(-1e30)))
        a("v_mov_b32 %s, %s" % (vr(d + 6), f32hex(-1e30)))
        a("v_mov_b32 %s, 0" % vr(d + 5))
        a("v_mov_b32 %s, 0" % vr(d + 7))
        a("v_mov_b32 %s, 0" % vr(d))
        a("v_mov_b32 %s, 0" % vr(d + 1))
    a.lab("L_neutral_done")
    for k in range(2):
        a("v_mov_b32 %s, %s" % (vr(vNM + k), vr(vMR + k)))
    for p in range(0, NSLOT, 2):
        for k in range(2):
            a("v_max3_f32 %s, %s, %s, %s" % (vr(vNM + k), vr(vNM + k), vr(vDAT + 12 * p + 4 + 2 * k),
                                            vr(vDAT + 12 * (p + 1) + 4 + 2 * k)))
    for k in range(2):
        a("v_mul_f32 %s, %s, %s" % (vr(vRL + k), f32hex(-SCALE_LOG2), vr(vNM + k)))
    for k in range(2):
        a("v_fma_f32 %s, %s, s%d, %s" % (vr(vSC + k), vr(vMR + k), sT3, vr(vRL + k)))
    for p in range(NSLOT):
        d = vDAT + 12 * p
        for k in range(2):
            a("v_fma_f32 %s, %s, s%d, %s" % (vr(d + 4 + 2 * k), vr(d + 4 + 2 * k), sT3, vr(vRL + k)))
    for k in range(2):
        a("v_exp_f32 %s, %s" % (vr(vSC + k), vr(vSC + k)))
    for p in range(NSLOT):
        d = vDAT + 12 * p
        for k in range(2):
            a("v_exp_f32 %s, %s" % (vr(d + 4 + 2 * k), vr(d + 4 + 2 * k)))
    for k in range(2):
        a("v_mul_f32 %s, %s, %s" % (vr(vLA + k), vr(vLA + k), vr(vSC + k)))
        a("v_mul_f32 %s, %s, %s" % (vr(vOA + k), vr(vOA + k), vr(vSC + k)))
        a("v_mov_b32 %s, %s" % (vr(vMR + k), vr(vNM + k)))
    for p in range(NSLOT):
        d = vDAT + 12 * p
        for k in range(2):
            a("v_fma_f32 %s, %s, %s, %s" % (vr(vLA + k), vr(d + 4 + 2 * k), vr(d + 5 + 2 * k), vr(vLA + k)))
    for k in range(2):
        a("v_rcp_f32 %s, %s" % (vr(vRL + k), vr(vLA + k)))
    a("s_mov_b32 s%d, s%d" % (SRDO, sOUT))
    a("s_and_b32 s%d, s%d, 0xffff" % (SRDO + 1, sOUT + 1))
    a("s_mov_b32 s%d, 0x10000" % (SRDO + 2))
    a("s_mov_b32 s%d, 0x20000" % (SRDO + 3))
    a("s_lshl_b32 s%d, s%d, 13" % (sB0, sBt))
    a("s_lshl_b32 s%d, s%d, 10" % (sT1, sG))
    a("s_add_u32 s%d, s%d, s%d" % (sB0, sB0, sT1))
    a("s_lshl_b32 s%d, s%d, 6" % (sT1, sQD))
    a("s_add_u32 s%d, s%d, s%d" % (sB0, sB0, sT1))
    a("s_mov_b32 s%d, 0" % sSPIN)
    a("s_min_u32 s%d, s%d, %d" % (sT0, sCNT, NSLOT))
    a("s_lshl_b32 s%d, 1, s%d" % (sT0, sT0))
    a("s_sub_u32 s%d, s%d, 1" % (sT0, sT0))
    a("s_cmp_eq_u32 s%d, 0" % sDRY)
    a("s_cselect_b32 s%d, s%d, 0" % (sPEND, sT0))
    for _ in range(OPT.get("odelay", 0)):
        a("s_sleep 8")
    if OPT.get("sent"):
        a("s_cmp_lg_u32 s%d, 0" % sDRY)
        a("s_cbranch_scc1 L_sentok")
        a.lab("L_sent")
        a("buffer_load_dwordx4 %s, %s, %s, 0 offen sc1" % (vr(vML, 4), vr(vSN), sq(SRDW)))
        a("s_waitcnt vmcnt(0)")
        a("v_cmp_eq_u64 vcc, %s, %s" % (sp(sNONCE), vr(vML + 2, 2)))
        a("s_add_u32 s%d, s%d, 1" % (sSPIN, sSPIN))
        a("s_cmp_eq_u64 vcc, -1")
        a("s_cbranch_scc1 L_sentok")
        a("s_cmp_gt_u32 s%d, 0x40000" % sSPIN)
        a("s_cbranch_scc1 L_end")
        a("s_branch L_sent")
        a.lab("L_sentok")
        if OPT["stamps"] and not OPT.get("light"):
            a("v_writelane_b32 %s, s%d, 13" % (vr(vST), sSPIN))
        a("s_mov_b32 s%d, 0" % sSPIN)
    a.lab("L_pollo")
    for p in range(NSLOT):
        d = vDAT + 12 * p
        a("s_bitcmp1_b32 s%d, %d" % (sPEND, p))
        a("s_cbranch_scc0 L_noload%d" % p)
        a("s_lshl_b32 s%d, s%d, 6" % (sT0, sREC + p))
        a("buffer_load_dwordx4 %s, %s, %s, s%d offen sc1" % (vr(d, 4), vr(vOO), sq(SRDW), sT0))
        a.lab("L_noload%d" % p)
    a("s_waitcnt vmcnt(0)")
    for p in range(NSLOT):
        d = vDAT + 12 * p
        a("v_cmp_eq_u64 vcc, %s, %s" % (sp(sNONCE), vr(d + 2, 2)))
        a("s_cmp_eq_u64 vcc, -1")
        a("s_cselect_b32 s%d, 0x%x, -1" % (sT0, 0xffffffff & ~(1 << p)))
        a("s_and_b32 s%d, s%d, s%d" % (sPEND, sPEND, sT0))
    a("s_cmp_eq_u32 s%d, 0" % sPEND)
    a("s_cbranch_scc1 L_ook")
    a("s_add_u32 s%d, s%d, 1" % (sSPIN, sSPIN))
    a("s_cmp_gt_u32 s%d, 0x40000" % sSPIN)
    a("s_cbranch_scc1 L_end")
    a("s_branch L_pollo")
    a.lab("L_ook")
    if OPT["stamps"] and not OPT.get("light"):
        a("v_writelane_b32 %s, s%d, 14" % (vr(vST), sSPIN))
    stamp()
    vO2 = vSC
    for k in range(2):
        a("v_mul_f32 %s, %s, %s" % (vr(vO2 + k), vr(vDAT + 12 + 4 + 2 * k), vr(vDAT + 12 + k)))
    for p in range(NSLOT):
        if p == 1:
            continue
        d = vDAT + 12 * p
        acc = vOA if (p & 1) == 0 else vO2
        for k in range(2):
            a("v_fma_f32 %s, %s, %s, %s" % (vr(acc + k), vr(d + 4 + 2 * k), vr(d + k), vr(acc + k)))
    for k in range(2):
        a("v_add_f32 %s, %s, %s" % (vr(vOA + k), vr(vOA + k), vr(vO2 + k)))
    a("s_add_u32 s%d, s%d, %d" % (sKK, sKK, NSLOT))
    a("s_cmp_lt_u32 s%d, s%d" % (sKK, sN))
    a("s_cbranch_scc0 L_final")
    recs()
    a("s_branch L_cbatch")
    a.lab("L_final")
    for k in range(2):
        a("v_mul_f32 %s, %s, %s" % (vr(vOA + k), vr(vOA + k), vr(vRL + k)))
    a("v_cvt_pk_bf16_f32 %s, %s, %s" % (vr(vOA), vr(vOA), vr(vOA + 1)))
    if OPT.get("dry"):
        a("s_cmp_lg_u32 s%d, 0" % sDRY)
        a("s_cbranch_scc1 C_dry_ret")
    a("buffer_store_short %s, %s, %s, s%d offen" % (vr(vOA), vr(vA1), sq(SRDO), sB0))
    a("buffer_store_short_d16_hi %s, %s, %s, s%d offen offset:256" % (vr(vOA), vr(vA1), sq(SRDO), sB0))
    if OPT["stamps"]:
        a("s_waitcnt vmcnt(0)")
        stamp(True)
        stampout(5)
    a.lab("L_end")
    a("s_endpgm")
    a.l = entry_lines + a.l + ldgen_lines + compute_lines


def build():
    a = A()
    kernel(a)
    s = HEADER
    s += "; @launch grid=(256,1,1) block=(320,1,1) lds=163840\n"
    s += '.amdgcn_target "amdgcn-amd-amdhsa--gfx950"\n.text\n'
    k = NAME + "_kernel"
    s += ".globl %s\n.p2align 8\n.type %s,@function\n" % (k, k) + a.text()
    s += """.section .rodata,"a"
.p2align 6
.amdhsa_kernel %s
  .amdhsa_next_free_vgpr 256
  .amdhsa_next_free_sgpr 102
  .amdhsa_accum_offset 256
  .amdhsa_group_segment_fixed_size 0
  .amdhsa_kernarg_size 64
  .amdhsa_user_sgpr_count 2
  .amdhsa_user_sgpr_kernarg_segment_ptr 1
  .amdhsa_system_sgpr_workgroup_id_x 1
.end_amdhsa_kernel
""" % k
    return s


if __name__ == "__main__":
    args = sys.argv[1:]
    for x in list(args):
        if x.startswith("--"):
            k = x[2:]
            if k.startswith("odelay="):
                OPT["odelay"] = int(k[7:])
            elif k == "light":
                OPT["light"] = True
                OPT["stamps"] = True
            elif k.startswith("perm="):
                OPT["perm"] = [int(c) for c in k[5:]]
            elif k.startswith("no"):
                OPT[k[2:]] = False
            else:
                OPT[k] = True
            args.remove(x)
    open(args[0] if args else "cdna_kernels/%s.s" % NAME, "w").write(build())
```

```python
import struct
import sys

NAME = "standalone__paged_block_table_kv_radixattention__sampling"

HEADER = """; Kernarg layout for this problem (64 bytes, ptrs only, base s[0:1]):
"""

NPHYS = 1152
KV_BYTES = NPHYS * 32768
WS_STAMP = 512 << 10
WS_O = 1 << 20
WS_ML = 17 << 20
WS_SIZE = 18 << 20
SCALE_LOG2 = 0.08838834764831845 * 1.4426950408889634
PRED_CTX = [4096 - (i * 2654435761) % 1024 for i in range(1, 9)]
PRED_S = 128
NSLOT = 12

OPT = dict(stamps=False, nt=True, prewarm=True)


def f32hex(x):
    return "0x%08x" % struct.unpack("<I", struct.pack("<f", x))[0]


class A:
    def __init__(self):
        self.l = []
        self.nstamp = 0

    def __call__(self, s):
        self.l.append("    " + s)

    def lab(self, s):
        self.l.append(s + ":")

    def c(self, s):
        self.l.append("    ; " + s)

    def text(self):
        return "\n".join(self.l) + "\n"


def vr(a, n=1):
    return "v%d" % a if n == 1 else "v[%d:%d]" % (a, a + n - 1)


def sp(a):
    return "s[%d:%d]" % (a, a + 1)


def sq(a):
    return "s[%d:%d]" % (a, a + 3)


def kernel(a):
    sMODE = 3
    sQ, sK, sV, sBT, sCTX, sOUT, sDBG, sWS = 4, 6, 8, 10, 12, 14, 16, 18
    sNONCE = 6
    sBAD = 8
    sDRY = 3
    sQRD = 9
    SRDK, SRDV, SRDW = 20, 24, 28
    sC = 32
    sB = 40
    sD = 49
    sSTP = 0
    sG, sI, sW, sS, sSH, sNR, sR = 57, 58, 59, 60, 61, 62, 63
    sSOFF = 64
    sJ16 = 72
    sMK = 80
    sT0, sT1, sT2, sT3 = 96, 97, 98, 99
    sWB, sCH = 100, 101
    sU = sB + 8
    vVOFF = 2
    vKA = 6
    vVA = 14
    vPW, vPR = 18, 19
    vCTXH, vCTXR = 20, 21
    vLIM = 22
    vMAX, vNINF = 30, 31
    vQ = 32
    vS = 64
    vKF = 128
    vVF = 160
    vT = 160
    vTMP = 192
    vONE = 208
    vOOFF = 212
    vX, vOFF, vTT, vM32, vJ, vID = 213, 214, 215, 216, 217, 218
    vNMC = 219
    vNON = 220
    vZERO = 222
    vN2 = 228
    vNOFF = 221
    vST = 223
    vACO = 224
    vACL = 240
    t0, t1, t2, t3, t4, t5 = (vTMP + k for k in range(6))
    NT = " nt" if OPT["nt"] else ""

    def stamp(final=False):
        if not OPT["stamps"]:
            return
        if OPT.get("light") and not final:
            a.nstamp += 1
            return
        a("s_memrealtime %s" % sp(sSTP))
        a("s_waitcnt lgkmcnt(0)")
        a("v_writelane_b32 %s, s%d, %d" % (vr(vST), sSTP, a.nstamp))
        a.nstamp += 1

    def chain():
        a("v_mov_b32 %s, 0" % vr(vOFF))
        for b in range(1, 8):
            a("v_cmpx_le_u32 vcc, s%d, %s" % (sB + b, vr(vX)))
            a("v_mov_b32 %s, s%d" % (vr(vOFF), sD + b))
        a("s_mov_b64 exec, -1")
        a("v_add_u32 %s, %s, %s" % (vr(vTT), vr(vX), vr(vOFF)))

    def chunk_index():
        a("s_lshl_b32 s%d, s%d, 5" % (sT0, sR))
        a("s_add_u32 s%d, s%d, s%d" % (sCH, sI, sT0))

    def decode8():
        chunk_index()
        a("s_lshl2_add_u32 s%d, s%d, s%d" % (sT0, sCH, sW))
        a("s_mul_i32 s%d, s%d, s%d" % (sT1, sT0, sU))
        a("s_add_u32 s%d, s%d, s%d" % (sT2, sT1, sU))
        a("s_lshr_b32 s%d, s%d, s%d" % (sT1, sT1, sSH))
        a("s_lshr_b32 s%d, s%d, s%d" % (sT2, sT2, sSH))
        a("v_add_u32 %s, s%d, v1" % (vr(vX), sT1))
        chain()
        a("v_cmp_gt_u32 vcc, s%d, %s" % (sT2, vr(vX)))

    def decode32():
        chunk_index()
        a("s_lshl_b32 s%d, s%d, 2" % (sT0, sCH))
        a("v_lshrrev_b32 %s, 3, v1" % vr(t0))
        a("v_add_u32 %s, s%d, %s" % (vr(t0), sT0, vr(t0)))
        a("v_mul_u32_u24 %s, s%d, %s" % (vr(t0), sU, vr(t0)))
        a("v_add_u32 %s, s%d, %s" % (vr(t1), sU, vr(t0)))
        a("v_lshrrev_b32 %s, s%d, %s" % (vr(t0), sSH, vr(t0)))
        a("v_lshrrev_b32 %s, s%d, %s" % (vr(t1), sSH, vr(t1)))
        a("v_and_b32 %s, 7, v1" % vr(t2))
        a("v_add_u32 %s, %s, %s" % (vr(vX), vr(t0), vr(t2)))
        chain()
        a("v_cmp_gt_u32 vcc, %s, %s" % (vr(t1), vr(vX)))

    def maskinfo():
        a("v_and_b32 %s, 0xff, %s" % (vr(vJ), vr(vTT)))
        a("v_lshlrev_b32 %s, 4, %s" % (vr(vJ), vr(vJ)))
        a("v_lshrrev_b32 %s, 8, %s" % (vr(t1), vr(vTT)))
        a("v_lshlrev_b32 %s, 2, %s" % (vr(t1), vr(t1)))
        a("v_lshlrev_b32_e64 %s, %s, 15" % (vr(vM32), vr(t1)))
        a("v_cmp_gt_u32 %s, s%d, %s" % (sp(sMK), sS, vr(vX)))
        a("v_mov_b32 %s, -1" % vr(t1))
        a("s_nop 0")
        a("v_cndmask_b32 %s, %s, %s, %s" % (vr(vM32), vr(vM32), vr(t1), sp(sMK)))
        a("v_cndmask_b32 %s, 0, %s, vcc" % (vr(vM32), vr(vM32)))

    def ids_to_soff():
        a("v_mov_b32 %s, 0x%x" % (vr(t1), NPHYS))
        a("v_min_u32 %s, 0x%x, %s" % (vr(vID), NPHYS, vr(vID)))
        a("v_cndmask_b32 %s, %s, %s, vcc" % (vr(vID), vr(t1), vr(vID)))
        a("v_lshlrev_b32 %s, 15, %s" % (vr(vID), vr(vID)))

    def partition():
        vTO = vTMP + 8
        a("s_mov_b32 s%d, 0" % sBAD)
        a("s_load_dwordx8 s[%d:%d], %s, 0" % (sC, sC + 7, sp(sCTX)))
        a("v_lshlrev_b32 %s, 4, v1" % vr(vTO))
        a("v_add_u32 %s, 0x1000, %s" % (vr(vTO + 1), vr(vTO)))
        for b in range(8):
            a("global_load_dwordx4 %s, %s, %s offset:%d" % (
                vr(vT + 4 * b, 4), vr(vTO if b < 4 else vTO + 1), sp(sBT), (b & 3) * 1024))
        a("s_waitcnt lgkmcnt(0)")
        for b in range(8):
            a("s_cmp_lt_i32 s%d, 1" % (sC + b))
            a("s_cselect_b32 s%d, 0x1000, s%d" % (sC + b, sC + b))
            a("s_min_i32 s%d, s%d, 0x1000" % (sC + b, sC + b))
            a("s_add_i32 s%d, s%d, 15" % (sC + b, sC + b))
            a("s_lshr_b32 s%d, s%d, 4" % (sC + b, sC + b))
        a("s_max_u32 s%d, s%d, s%d" % (sT0, sC, sC + 1))
        for b in range(2, 8):
            a("s_max_u32 s%d, s%d, s%d" % (sT0, sT0, sC + b))
        a("s_waitcnt vmcnt(0)")
        for c in range(4):
            a("v_sad_u32 %s, %s, %s, 0" % (vr(t0 + c), vr(vT + 4 + c), vr(vT + c)))
        for b in range(2, 8):
            for c in range(4):
                a("v_sad_u32 %s, %s, %s, %s" % (vr(t0 + c), vr(vT + 4 * b + c), vr(vT + c), vr(t0 + c)))
        for c in range(4):
            a("v_cmp_ne_u32 %s, 0, %s" % (sp(sMK + 2 * c), vr(t0 + c)))
        a("s_nop 3")
        for c in range(4):
            a("s_ff1_i32_b64 s%d, %s" % (sJ16 + c, sp(sMK + 2 * c)))
            a("s_lshl2_add_u32 s%d, s%d, %d" % (sJ16 + c, sJ16 + c, c))
        a("s_min_u32 s%d, s%d, s%d" % (sS, sJ16, sJ16 + 1))
        a("s_min_u32 s%d, s%d, s%d" % (sS, sS, sJ16 + 2))
        a("s_min_u32 s%d, s%d, s%d" % (sS, sS, sJ16 + 3))
        a("s_min_u32 s%d, s%d, s%d" % (sS, sS, sT0))
        a("s_mov_b32 s%d, s%d" % (sB, sS))
        for b in range(8):
            a("s_sub_i32 s%d, s%d, s%d" % (sT1, sC + b, sS))
            a("s_max_i32 s%d, s%d, 0" % (sT1, sT1))
            a("s_add_u32 s%d, s%d, s%d" % (sB + b + 1, sB + b, sT1))
            if b >= 1:
                a("s_sub_u32 s%d, s%d, s%d" % (sD + b, sS, sB + b))
                a("s_add_u32 s%d, s%d, %d" % (sD + b, sD + b, 256 * b))
        a("s_cmp_gt_u32 s%d, 1024" % sU)
        a("s_cselect_b32 s%d, 8, 7" % sSH)
        a("s_cselect_b32 s%d, 2, 1" % sNR)
        a("s_mov_b32 s%d, 0" % sR)

    def srd(dst, p, n):
        a("s_mov_b32 s%d, s%d" % (dst, p))
        a("s_and_b32 s%d, s%d, 0xffff" % (dst + 1, p + 1))
        a("s_mov_b32 s%d, 0x%x" % (dst + 2, n))
        a("s_mov_b32 s%d, 0x20000" % (dst + 3))

    def nonce_wait(tag):
        a("s_mov_b32 s%d, 0" % sT3)
        a.lab("L_noncewait" + tag)
        a("v_readfirstlane_b32 s%d, %s" % (sNONCE, vr(vN2)))
        a("v_readfirstlane_b32 s%d, %s" % (sNONCE + 1, vr(vN2 + 1)))
        a("s_nop 1")
        a("s_cmp_lg_u32 s%d, 0" % sNONCE)
        a("s_cbranch_scc1 L_nonceok" + tag)
        a("s_add_u32 s%d, s%d, 1" % (sT3, sT3))
        a("s_cmp_gt_u32 s%d, 0x100000" % sT3)
        a("s_cbranch_scc1 L_nonceok" + tag)
        a("s_sleep 2")
        a("global_load_dwordx2 %s, %s, %s sc1" % (vr(vN2, 2), vr(vNOFF), sp(sDBG)))
        a("s_waitcnt vmcnt(0)")
        a("s_branch L_noncewait" + tag)
        a.lab("L_nonceok" + tag)

    def stampout(nw):
        a("s_mul_i32 s96, s2, 5")
        a("s_add_u32 s96, s96, s%d" % sW)
        a("s_lshl_b32 s96, s96, 6")
        a("s_add_u32 s96, s96, 0x%x" % WS_STAMP)
        a("v_lshlrev_b32 %s, 2, v1" % vr(t0))
        a("s_mov_b64 exec, 0xffff")
        a("buffer_store_dword %s, %s, %s, s96 offen" % (vr(vST), vr(t0), sq(SRDW)))
        a("s_endpgm")

    a.lab(NAME + "_kernel")
    a("s_cmp_ge_u32 s2, 256")
    a("s_cbranch_scc1 L_end")
    a("s_load_dwordx16 s[4:19], s[0:1], 0")
    a("v_and_b32 v1, 63, v0")
    a("v_lshrrev_b32 v2, 6, v0")
    a("s_and_b32 s%d, s2, 7" % sG)
    if OPT.get("perm"):
        packed = 0
        for x, g in enumerate(OPT["perm"]):
            packed |= g << (4 * x)
        a("s_lshl_b32 s%d, s%d, 2" % (sG, sG))
        a("s_lshr_b32 s%d, 0x%x, s%d" % (sG, packed, sG))
        a("s_and_b32 s%d, s%d, 7" % (sG, sG))
    a("s_lshr_b32 s%d, s2, 3" % sI)
    a("v_readfirstlane_b32 s%d, v2" % sW)
    if OPT["stamps"]:
        a("v_mov_b32 %s, 0" % vr(vST))
        a("s_memrealtime %s" % sp(96))
        a("s_waitcnt lgkmcnt(0)")
        a("v_writelane_b32 %s, s96, 0" % vr(vST))
        a.nstamp = 1
    a.c("predicted partition (verified against the real table / lengths below)")
    nb = [(c + 15) // 16 for c in PRED_CTX]
    B = [PRED_S]
    for b in range(8):
        B.append(B[-1] + max(nb[b] - PRED_S, 0))
    a("s_mov_b32 s%d, %d" % (sS, PRED_S))
    for k in range(9):
        a("s_mov_b32 s%d, %d" % (sB + k, B[k]))
    for b in range(1, 8):
        a("s_mov_b32 s%d, %d" % (sD + b, PRED_S - B[b] + 256 * b))
    a("s_mov_b32 s%d, 7" % sSH)
    a("s_mov_b32 s%d, 1" % sNR)
    a("s_mov_b32 s%d, 0" % sR)
    a("s_mov_b32 s%d, 0" % sDRY)
    a("v_mov_b32 %s, 0" % vr(vZERO))
    a("s_cmp_lg_u32 s%d, 4" % sW)
    a("s_cbranch_scc1 C_entry")
    entry_lines = a.l
    a.l = []

    a.lab("C_entry")
    st0 = a.nstamp
    if OPT.get("skipcompute"):
        a("v_mov_b32 %s, 0" % vr(t0))
        a("s_lshl_b32 s%d, s%d, 15" % (sT0, sW))
        a("s_add_u32 s%d, s%d, %d" % (sT0, sT0, 3 * 8192))
        a("v_mov_b32 %s, s%d" % (vr(t1), sT0))
        for k in range(4):
            a("s_barrier")
        a("ds_write_b32 %s, %s" % (vr(t1), vr(t0)))
        a("s_waitcnt lgkmcnt(0)")
        for k in range(4):
            a("s_barrier")
        a("s_endpgm")
    a("s_lshl_b32 s%d, s%d, 15" % (sWB, sW))
    decode8()
    maskinfo()
    vTO, vQO, vCO = vTMP + 8, vTMP + 10, vTMP + 11
    a("v_lshlrev_b32 %s, 4, v1" % vr(vTO))
    a("s_lshl_b32 s%d, s%d, 11" % (sT0, sW))
    a("v_add_u32 %s, s%d, %s" % (vr(vTO), sT0, vr(vTO)))
    a("v_bfe_u32 %s, v1, 2, 3" % vr(t0))
    a("v_lshlrev_b32 %s, 2, %s" % (vr(vCO), vr(t0)))
    a("v_and_b32 %s, 31, v1" % vr(t0))
    a("v_lshrrev_b32 %s, 5, v1" % vr(t1))
    a("v_lshlrev_b32 %s, 4, %s" % (vr(t0), vr(t0)))
    a("v_lshl_add_u32 %s, %s, 11, %s" % (vr(t0), vr(t1), vr(t0)))
    a("s_lshl_b32 s%d, s%d, 9" % (sT1, sW))
    a("v_add_u32 %s, s%d, %s" % (vr(vOOFF), sT1, vr(t0)))
    a("s_waitcnt lgkmcnt(0)")
    stamp()
    a("s_load_dwordx8 s[%d:%d], %s, 0" % (sC, sC + 7, sp(sCTX)))
    a("global_load_dword %s, %s, %s" % (vr(vCTXR), vr(vCO), sp(sCTX)))
    vTS = 236
    for r in range(2):
        a("global_load_dwordx4 %s, %s, %s offset:%d" % (vr(vTS + 4 * r, 4), vr(vTO), sp(sBT), r * 1024))
    srd(SRDW, sWS, WS_SIZE)
    a("s_mov_b32 s%d, 0" % sQRD)
    if OPT["prewarm"]:
        a.c("address-translation warm-up for the record area and the output")
        a("s_lshl_b32 s%d, s%d, 6" % (sT0, sG))
        a("s_add_u32 s%d, s%d, s%d" % (sT0, sT0, sI))
        a("s_lshl_b32 s%d, s%d, 15" % (sT1, sT0))
        a("s_add_u32 s%d, s%d, 0x%x" % (sT1, sT1, WS_O))
        a("s_lshl_b32 s%d, s%d, 11" % (sT2, sT0))
        a("s_add_u32 s%d, s%d, 0x%x" % (sT2, sT2, WS_ML))
        a("buffer_load_dword %s, %s, %s, s%d offen" % (vr(vACO), vr(vZERO), sq(SRDW), sT1))
        a("buffer_load_dword %s, %s, %s, s%d offen" % (vr(vACO + 1), vr(vZERO), sq(SRDW), sT2))
        a("global_load_dword %s, %s, %s" % (vr(vACO + 2), vr(vZERO), sp(sOUT)))
    a.c("nonce: workgroup 0 / wave 0 publishes a per-launch tag in d_debug")
    a("s_or_b32 s%d, s2, s%d" % (sT0, sW))
    a("s_cmp_lg_u32 s%d, 0" % sT0)
    a("s_cbranch_scc1 L_nononce")
    a("s_memrealtime %s" % sp(96))
    a("s_waitcnt lgkmcnt(0)")
    a("s_or_b32 s96, s96, 1")
    a("v_mov_b32 %s, s96" % vr(t0))
    a("v_mov_b32 %s, s97" % vr(t1))
    a("v_lshlrev_b32 %s, 6, v1" % vr(t2))
    a("s_mov_b64 exec, 15")
    a("global_store_dwordx2 %s, %s, %s sc1" % (vr(t2), vr(t0, 2), sp(sDBG)))
    a("s_mov_b64 exec, -1")
    a.lab("L_nononce")
    a("s_and_b32 s%d, s%d, 3" % (sT0, sI))
    a("s_lshl_b32 s%d, s%d, 6" % (sT0, sT0))
    a("v_mov_b32 %s, s%d" % (vr(vNOFF), sT0))
    a.c("remaining lane constants")
    a("v_and_b32 %s, 31, v1" % vr(t0))
    a("v_lshrrev_b32 %s, 5, v1" % vr(t1))
    a("v_and_b32 %s, 3, v1" % vr(t2))
    a("v_bfe_u32 %s, v1, 2, 2" % vr(vTMP + 6))
    a("v_lshl_or_b32 %s, %s, 2, %s" % (vr(t2), vr(t2), vr(vTMP + 6)))
    a("v_xor_b32 %s, %s, %s" % (vr(t2), vr(t2), vr(t1)))
    a("v_lshlrev_b32 %s, 4, %s" % (vr(t2), vr(t2)))
    a("v_lshl_add_u32 %s, %s, 8, %s" % (vr(t2), vr(t0), vr(t2)))
    a("v_add_u32 %s, s%d, %s" % (vr(vKA), sWB, vr(t2)))
    for s in range(1, 8):
        a("v_xor_b32 %s, %d, %s" % (vr(vKA + s), s << 5, vr(vKA)))
    u0, u1, u2, u3, u4, u5 = (vLIM + k for k in range(6))
    a("v_bfe_u32 %s, v1, 2, 2" % vr(u0))
    a("v_lshrrev_b32 %s, 5, v1" % vr(u1))
    a("v_bfe_u32 %s, v1, 4, 1" % vr(u2))
    a("v_bfe_u32 %s, v1, 1, 1" % vr(u3))
    a("v_lshl_or_b32 %s, %s, 1, %s" % (vr(u2), vr(u2), vr(u3)))
    a("s_lshl_b32 s%d, s%d, 2" % (sT1, sW))
    a("v_or_b32 %s, s%d, %s" % (vr(u2), sT1, vr(u2)))
    for u in range(2):
        a("v_lshl_or_b32 %s, %s, 2, %s" % (vr(u3), vr(u0), vr(u1)))
        if u:
            a("v_or_b32 %s, 2, %s" % (vr(u3), vr(u3)))
        a("v_xor_b32 %s, %s, %s" % (vr(u3), vr(u3), vr(u2)))
        a("v_lshlrev_b32 %s, 4, %s" % (vr(u3), vr(u3)))
        a("v_lshl_add_u32 %s, %s, 2, %s" % (vr(u4), vr(u1), vr(u0)))
        a("v_add_u32 %s, %d, %s" % (vr(u4), 8 * u, vr(u4)))
        a("v_lshl_add_u32 %s, %s, 8, %s" % (vr(u3), vr(u4), vr(u3)))
        a("v_and_b32 %s, 1, v1" % vr(u5))
        a("v_lshl_add_u32 %s, %s, 3, %s" % (vr(vVA + u), vr(u5), vr(u3)))
        a("v_add_u32 %s, 0x10000, %s" % (vr(vVA + 2 + u), vr(vVA + u)))
    a("v_lshlrev_b32 %s, 4, v1" % vr(u0))
    a("v_add_u32 %s, 0x20000, %s" % (vr(vPR), vr(u0)))
    a("s_lshl_b32 s%d, s%d, 13" % (sT1, sW))
    a("v_add_u32 %s, s%d, %s" % (vr(vPW), sT1, vr(vPR)))
    a("v_mov_b32 %s, 0xff800000" % vr(vNINF))
    for k in range(4):
        a("v_mov_b32 %s, 0x3f803f80" % vr(vONE + k))
    a.c("verify the prediction: lengths (scalar) and table rows 2w, 2w+1")
    a("s_waitcnt lgkmcnt(0)")
    a("s_mov_b32 s%d, 0" % sBAD)
    for b in range(8):
        a("s_cmp_lg_u32 s%d, %d" % (sC + b, PRED_CTX[b]))
        a("s_cselect_b32 s%d, 1, s%d" % (sBAD, sBAD))
    a("s_waitcnt vmcnt(%d)" % (3 if OPT["prewarm"] else 0))
    a("v_lshrrev_b32 %s, 5, v1" % vr(u0))
    a("v_lshlrev_b32 %s, 7, %s" % (vr(u0), vr(u0)))
    a("v_lshlrev_b32 %s, 2, v1" % vr(u1))
    a("s_lshl_b32 s%d, s%d, 1" % (sT0, sW))
    a("v_mov_b32 %s, 0" % vr(u3))
    for r in range(2):
        a("v_mad_u32_u24 %s, %s, s%d, %s" % (vr(u2), vr(u0), sT0, vr(u1)))
        for c in range(4):
            a("v_add_u32 %s, %d, %s" % (vr(u4), c, vr(u2)))
            a("v_sad_u32 %s, %s, %s, %s" % (vr(u3), vr(vTS + 4 * r + c), vr(u4), vr(u3)))
        a("s_add_u32 s%d, s%d, 1" % (sT0, sT0))
    a("v_cmp_ne_u32 vcc, 0, %s" % vr(u3))
    a("s_nop 3")
    a("s_cmp_lg_u64 vcc, 0")
    a("s_cselect_b32 s%d, 1, s%d" % (sBAD, sBAD))
    a("s_branch C_body")

    a.lab("C_generic")
    partition()
    a.lab("C_round")
    decode8()
    maskinfo()

    a.lab("C_body")
    a("v_cmp_gt_i32 vcc, 1, %s" % vr(vCTXR))
    a("v_mov_b32 %s, 0x1000" % vr(t0))
    a("v_min_i32 %s, 0x1000, %s" % (vr(t1), vr(vCTXR)))
    a("v_cndmask_b32 %s, %s, %s, vcc" % (vr(t1), vr(t1), vr(t0)))
    a("v_lshrrev_b32 %s, 5, v1" % vr(t2))
    a("v_lshlrev_b32 %s, 2, %s" % (vr(t2), vr(t2)))
    a("v_sub_u32 %s, %s, %s" % (vr(vCTXH), vr(t1), vr(t2)))
    for u in range(8):
        a("v_readlane_b32 s%d, %s, %d" % (sJ16 + u, vr(vJ), u))
        a("v_readlane_b32 s%d, %s, %d" % (sMK + 2 * u, vr(vM32), u))
        a("v_readlane_b32 s%d, %s, %d" % (sMK + 2 * u + 1, vr(vM32), u))
    a("s_nop 1")
    for u in range(8):
        a("v_cndmask_b32 %s, 0, %s, %s" % (vr(vLIM + u), vr(vCTXH), sp(sMK + 2 * u)))
    for u in range(8):
        a("v_subrev_u32 %s, s%d, %s" % (vr(vLIM + u), sJ16 + u, vr(vLIM + u)))
    a("v_mov_b32 %s, %s" % (vr(vMAX), vr(vNINF)))
    a.c("relevance mask of the 8 batches for this chunk, record bases")
    sU0, sU1, sREL, sOB, sMB = sSOFF, sSOFF + 1, sSOFF + 2, sSOFF + 3, sSOFF + 4
    a("s_lshl_b32 s%d, s%d, 2" % (sT0, sCH))
    a("s_mul_i32 s%d, s%d, s%d" % (sU0, sT0, sU))
    a("s_lshl2_add_u32 s%d, s%d, s%d" % (sU1, sU, sU0))
    a("s_lshr_b32 s%d, s%d, s%d" % (sU0, sU0, sSH))
    a("s_lshr_b32 s%d, s%d, s%d" % (sU1, sU1, sSH))
    a("s_mov_b32 s%d, 0" % sREL)
    for b in range(8):
        a("s_cmp_lt_u32 s%d, s%d" % (sU0, sB + b + 1))
        a("s_cselect_b32 s%d, %d, 0" % (sT0, 1 << b))
        a("s_cmp_gt_u32 s%d, s%d" % (sU1, sB + b))
        a("s_cselect_b32 s%d, s%d, 0" % (sT0, sT0))
        a("s_or_b32 s%d, s%d, s%d" % (sREL, sREL, sT0))
    a("s_cmp_lt_u32 s%d, s%d" % (sU0, sS))
    a("s_cselect_b32 s%d, 0xff, s%d" % (sREL, sREL))
    a("s_lshl_b32 s%d, s%d, 6" % (sT0, sG))
    a("s_add_u32 s%d, s%d, s%d" % (sT0, sT0, sCH))
    a("s_lshl_b32 s%d, s%d, 14" % (sOB, sT0))
    a("s_add_u32 s%d, s%d, 0x%x" % (sOB, sOB, WS_O))
    a("s_lshl_b32 s%d, s%d, 11" % (sMB, sT0))
    a("s_add_u32 s%d, s%d, 0x%x" % (sMB, sMB, WS_ML))
    a("s_lshl_b32 s%d, s%d, 6" % (sT0, sW))
    a("s_add_u32 s%d, s%d, s%d" % (sMB, sMB, sT0))

    a.c("S phase")
    for t in range(4):
        a("s_barrier")
        stamp()
        if t == 0:
            a.c("Q fragments from the staged copy (first pass only); zero Q of empty-context batches")
            a("s_cmp_lg_u32 s%d, 0" % sQRD)
            a("s_cbranch_scc1 L_qdone")
            a("s_mov_b32 s%d, 1" % sQRD)
            a("s_sub_u32 s%d, 0x20000, s%d" % (sT0, sWB))
            for s in range(8):
                a("v_add_u32 %s, s%d, %s" % (vr(vVF + s), sT0, vr(vKA + s)))
            for s in range(8):
                a("ds_read_b128 %s, %s" % (vr(vQ + 4 * s, 4), vr(vVF + s)))
            a("v_cmp_lt_i32 vcc, 0, %s" % vr(vCTXR))
            a("s_waitcnt lgkmcnt(0)")
            for k in range(32):
                a("v_cndmask_b32 %s, 0, %s, vcc" % (vr(vQ + k), vr(vQ + k)))
            a.lab("L_qdone")
        for s in range(8):
            a("ds_read_b128 %s, %s offset:%d" % (vr(vKF + 4 * s, 4), vr(vKA + s), t * 8192))
        for s in range(8):
            a("s_waitcnt lgkmcnt(%d)" % (7 - s))
            a("v_mfma_f32_32x32x16_bf16 %s, %s, %s, %s" % (
                vr(vS + 16 * t, 16), vr(vKF + 4 * s, 4), vr(vQ + 4 * s, 4),
                "0" if s == 0 else vr(vS + 16 * t, 16)))
        if t == 1:
            a("s_cmp_lg_u32 s%d, 0" % sW)
            a("s_cbranch_scc1 L_nonld")
            a("global_load_dwordx2 %s, %s, %s sc1" % (vr(vN2, 2), vr(vNOFF), sp(sDBG)))
            a.lab("L_nonld")
        a("s_nop 3")
        for half in range(2):
            u = 2 * t + half
            for r8 in range(8):
                const = 8 * ((r8 >> 2) & 1) + (r8 & 3)
                a("v_cmp_lt_i32 %s, %d, %s" % (sp(sMK + 2 * r8), const, vr(vLIM + u)))
            for r8 in range(8):
                r = vS + 16 * t + 8 * half + r8
                a("v_cndmask_b32 %s, %s, %s, %s" % (vr(r), vr(vNINF), vr(r), sp(sMK + 2 * r8)))
            for r8 in range(0, 8, 2):
                r = vS + 16 * t + 8 * half + r8
                a("v_max3_f32 %s, %s, %s, %s" % (vr(vMAX), vr(vMAX), vr(r), vr(r + 1)))
    a.c("max exchange: every wave writes {max[32], flag[32]} into the P area of every compute wave")
    a("s_cmp_lg_u32 s%d, 0" % sW)
    a("s_cbranch_scc1 L_nonw0")
    a("s_waitcnt vmcnt(0)")
    nonce_wait("C")
    a.lab("L_nonw0")
    a("v_mov_b32 %s, %s" % (vr(t0), vr(vMAX)))
    a("s_nop 1")
    a("v_permlane32_swap_b32 %s, %s" % (vr(vMAX), vr(t0)))
    a("v_mov_b32 %s, s%d" % (vr(t1), sBAD))
    a("v_cmp_gt_u32 vcc, 32, v1")
    a("v_max_f32 %s, %s, %s" % (vr(vMAX), vr(vMAX), vr(t0)))
    a("v_lshlrev_b32 %s, 2, v1" % vr(t2))
    a("v_cndmask_b32 %s, %s, %s, vcc" % (vr(t3), vr(t1), vr(vMAX)))
    a("v_writelane_b32 %s, s%d, 62" % (vr(t3), sNONCE))
    a("v_writelane_b32 %s, s%d, 63" % (vr(t3), sNONCE + 1))
    a("v_writelane_b32 %s, s%d, 2" % (vr(t1), sNONCE))
    a("v_writelane_b32 %s, s%d, 3" % (vr(t1), sNONCE + 1))
    a("s_lshl_b32 s%d, s%d, 8" % (sT0, sW))
    a("s_add_u32 s%d, s%d, 0x20000" % (sT0, sT0))
    a("v_add_u32 %s, s%d, %s" % (vr(t2), sT0, vr(t2)))
    for w in range(4):
        a("ds_write_b32 %s, %s offset:%d" % (vr(t2), vr(t3), w * 8192))
    a("s_add_u32 s%d, s%d, %d" % (sT0, sWB, 3 * 8192))
    a("v_lshlrev_b32 %s, 2, v1" % vr(t2))
    a("v_add_u32 %s, s%d, %s" % (vr(t2), sT0, vr(t2)))
    a("ds_write_b32 %s, %s" % (vr(t2), vr(t1)))
    a("v_and_b32 %s, 31, v1" % vr(t3))
    a("v_lshlrev_b32 %s, 2, %s" % (vr(t3), vr(t3)))
    a("s_lshl_b32 s%d, s%d, 13" % (sT0, sW))
    a("s_add_u32 s%d, s%d, 0x20000" % (sT0, sT0))
    a("v_add_u32 %s, s%d, %s" % (vr(t3), sT0, vr(t3)))
    a("s_waitcnt lgkmcnt(0)")
    a("s_barrier")
    stamp()
    X = vKF
    for w in range(4):
        a("ds_read2_b32 %s, %s offset0:%d offset1:%d" % (vr(X + 2 * w, 2), vr(t3), w * 64, w * 64 + 32))
    a("v_mov_b32 %s, s%d" % (vr(t4), sT0))
    a("ds_read_b64 %s, %s offset:248" % (vr(X + 8, 2), vr(t4)))
    a("s_waitcnt lgkmcnt(0)")
    a("v_readfirstlane_b32 s%d, %s" % (sNONCE, vr(X + 8)))
    a("v_readfirstlane_b32 s%d, %s" % (sNONCE + 1, vr(X + 9)))
    a("v_or3_b32 %s, %s, %s, %s" % (vr(t0), vr(X + 1), vr(X + 3), vr(X + 5)))
    a("v_or_b32 %s, %s, %s" % (vr(t0), vr(t0), vr(X + 7)))
    a("v_max3_f32 %s, %s, %s, %s" % (vr(vMAX), vr(X), vr(X + 2), vr(X + 4)))
    a("v_readfirstlane_b32 s%d, %s" % (sT0, vr(t0)))
    a("v_mov_b32 %s, %s" % (vr(t0), f32hex(-1e30)))
    a("v_max3_f32 %s, %s, %s, %s" % (vr(vMAX), vr(vMAX), vr(X + 6), vr(t0)))
    a("s_nop 1")
    a("s_cmp_lg_u32 s%d, 0" % sT0)
    a("s_cbranch_scc1 C_fallback")
    a("s_mov_b32 s%d, %s" % (sT0, f32hex(SCALE_LOG2)))
    a("v_mul_f32 %s, %s, %s" % (vr(vNMC), f32hex(-SCALE_LOG2), vr(vMAX)))
    a.c("P phase (+ row sums of this wave's P through a ones-MFMA)")
    GA, GB = vTMP + 8, vTMP + 12
    for u in range(8):
        base = vS + 8 * u
        for k in range(8):
            a("v_fma_f32 %s, %s, s%d, %s" % (vr(base + k), vr(base + k), sT0, vr(vNMC)))
        for k in range(8):
            a("v_exp_f32 %s, %s" % (vr(base + k), vr(base + k)))
        pk = vTMP + 4 * (u & 1)
        for k in range(4):
            a("v_cvt_pk_bf16_f32 %s, %s, %s" % (vr(pk + k), vr(base + 2 * k), vr(base + 2 * k + 1)))
        a("ds_write_b128 %s, %s offset:%d" % (vr(vPW), vr(pk, 4), u * 1024))
        a("s_nop 0")
        a("v_mfma_f32_32x32x16_bf16 %s, %s, %s, %s" % (
            vr(vACL, 16), vr(vONE, 4), vr(pk, 4), "0" if u == 0 else vr(vACL, 16)))
    a("s_waitcnt vmcnt(0)")
    a("v_mov_b32 %s, s%d" % (vr(GA + 2), sNONCE))
    a("v_mov_b32 %s, s%d" % (vr(GA + 3), sNONCE + 1))
    a("v_bfe_u32 %s, v1, 2, 3" % vr(t4))
    if OPT.get("skippub"):
        a("s_mov_b32 s%d, 0" % sREL)
    a("v_lshrrev_b32_e64 %s, %s, s%d" % (vr(t5), vr(t4), sREL))
    a("v_and_b32 %s, 1, %s" % (vr(t5), vr(t5)))
    a("v_cmp_eq_u32 vcc, 1, %s" % vr(t5))
    a("v_lshlrev_b32 %s, 8, %s" % (vr(t4), vr(t4)))
    a("v_and_b32 %s, 3, v1" % vr(t5))
    a("v_lshl_add_u32 %s, %s, 4, %s" % (vr(t4), vr(t5), vr(t4)))
    a("v_mov_b32 %s, %s" % (vr(GA), vr(vMAX)))
    a("v_mov_b32 %s, %s" % (vr(GA + 1), vr(vACL)))
    a("s_and_b32 exec_lo, vcc_lo, -1")
    a("s_mov_b32 exec_hi, 0")
    a("s_cbranch_execz L_noml2")
    a("buffer_store_dwordx4 %s, %s, %s, s%d offen sc1" % (vr(GA, 4), vr(t4), sq(SRDW), sMB))
    a.lab("L_noml2")
    a("s_mov_b64 exec, -1")
    a("s_waitcnt lgkmcnt(0)")
    a("s_barrier")
    stamp()
    GC = vTMP
    sSEL = sJ16
    a("s_mov_b32 s%d, 0x07060503" % sSEL)
    a("s_mov_b32 s%d, 0x07060502" % (sSEL + 1))
    a("s_mov_b32 s%d, 0x07060501" % (sSEL + 2))
    a("v_mov_b32 %s, s%d" % (vr(GB + 3), sNONCE))
    a("v_mov_b32 %s, s%d" % (vr(GC + 3), sNONCE))
    a.c("PV phase")
    PF = lambda k: vS + 4 * (k & 15)
    VF = lambda k: vKF + 4 * (k & 15)

    def rd_p(t, k8):
        w, s_ = k8 >> 1, k8 & 1
        a("ds_read_b128 %s, %s offset:%d" % (vr(PF(8 * t + k8), 4), vr(vPR), (w * 8 + 2 * t + s_) * 1024))

    def rd_v(t, k8):
        w, s_ = k8 >> 1, k8 & 1
        for u in range(2):
            a("ds_read_b64_tr_b16 %s, %s offset:%d" % (
                vr(VF(8 * t + k8) + 2 * u, 2), vr(vVA + 2 * (w >> 1) + u),
                (w & 1) * 32768 + t * 8192 + s_ * 4096))

    def mf_l(t, k8):
        a("v_mfma_f32_32x32x16_bf16 %s, %s, %s, %s" % (
            vr(vACL, 16), vr(vONE, 4), vr(PF(8 * t + k8), 4),
            "0" if (t == 0 and k8 == 0) else vr(vACL, 16)))

    def mf_o(t, k8):
        a("v_mfma_f32_32x32x16_bf16 %s, %s, %s, %s" % (
            vr(vACO, 16), vr(PF(8 * t + k8), 4), vr(VF(8 * t + k8), 4),
            "0" if (t == 0 and k8 == 0) else vr(vACO, 16)))

    seq = [(t, k) for t in range(2) for k in range(8)]
    for i in range(4):
        rd_p(*seq[i])
        rd_v(*seq[i])
    for i, (t, k) in enumerate(seq):
        ahead = min(3, len(seq) - 1 - i)
        a("s_waitcnt lgkmcnt(%d)" % (3 * ahead))
        mf_o(t, k)
        if i + 4 < len(seq):
            rd_p(*seq[i + 4])
            rd_v(*seq[i + 4])
    for t in (2, 3):
        for k in range(8):
            rd_p(t, k)
    a("s_mul_i32 s%d, s%d, 896" % (sT3, sNR))
    for t in (2, 3):
        if t == 2:
            a("s_waitcnt lgkmcnt(0)")
        a("s_barrier")
        stamp()
        if t == 2:
            for k in range(8):
                rd_v(t, k)
            for k in range(8):
                a("s_waitcnt lgkmcnt(%d)" % (14 - 2 * k))
                mf_o(t, k)
        else:
            for k in (0, 2, 4, 6):
                rd_v(t, k)
            for j, k in enumerate((0, 2, 4, 6)):
                a("s_waitcnt lgkmcnt(%d)" % (6 - 2 * j))
                mf_o(t, k)
            a("s_cmp_le_u32 s%d, s%d" % (sU, sT3))
            a("s_cbranch_scc1 L_pv3done")
            for k in (1, 3, 5, 7):
                rd_v(t, k)
            for j, k in enumerate((1, 3, 5, 7)):
                a("s_waitcnt lgkmcnt(%d)" % (6 - 2 * j))
                mf_o(t, k)
            a.lab("L_pv3done")
    a("s_nop 8")
    a.c("publish O: {head0|x, head1|y, head2|z, tag}, head 3 = bytes x,y,z")
    for gq in range(4):
        q = GB if (gq & 1) == 0 else GC
        a("s_bfe_i32 exec_lo, s%d, 0x%x" % (sREL, 0x10000 | (2 * gq)))
        a("s_bfe_i32 exec_hi, s%d, 0x%x" % (sREL, 0x10000 | (2 * gq + 1)))
        a("s_add_u32 s%d, s%d, %d" % (sT2, sOB, gq * 4096))
        a("s_cbranch_execz L_skipo%d" % gq)
        for k in range(3):
            a("v_perm_b32 %s, %s, %s, s%d" % (vr(q + k), vr(vACO + 4 * gq + k), vr(vACO + 4 * gq + 3), sSEL + k))
        a("buffer_store_dwordx4 %s, %s, %s, s%d offen sc1" % (vr(q, 4), vr(vOOFF), sq(SRDW), sT2))
        a.lab("L_skipo%d" % gq)
    a("s_mov_b64 exec, -1")
    stamp(True)
    a("s_add_u32 s%d, s%d, 1" % (sR, sR))
    a("s_cmp_ge_u32 s%d, s%d" % (sR, sNR))
    if OPT["stamps"]:
        a("s_cbranch_scc1 C_stampout")
    else:
        a("s_cbranch_scc1 L_end")
    a("s_waitcnt vmcnt(0)")
    a("s_barrier")
    a("s_branch C_round")
    a.lab("C_fallback")
    a("s_waitcnt vmcnt(0) lgkmcnt(0)")
    a("s_barrier")
    a("s_branch C_generic")
    if OPT["stamps"]:
        a.lab("C_stampout")
        stampout(5)

    compute_lines = a.l
    a.l = []
    a.lab("LD_entry")
    a.nstamp = st0
    if OPT.get("prio"):
        a("s_setprio 3")
    a("v_lshrrev_b32 %s, 4, v1" % vr(t0))
    a("v_and_b32 %s, 15, v1" % vr(t1))
    a("s_lshl_b32 s%d, s%d, 8" % (sT0, sG))
    for p in range(4):
        a("v_lshl_or_b32 %s, %s, 2, %d" % (vr(t2), vr(t0), p))
        a("v_xor_b32 %s, %s, %s" % (vr(t2), vr(t2), vr(t1)))
        a("v_lshlrev_b32 %s, 4, %s" % (vr(t2), vr(t2)))
        a("v_lshl_add_u32 %s, %s, 11, %s" % (vr(t2), vr(t0), vr(t2)))
        a("v_add_u32 %s, %d, %s" % (vr(t2), p * 8192 - 1024 * p, vr(t2)))
        a("v_add_u32 %s, s%d, %s" % (vr(vVOFF + p), sT0, vr(t2)))
    decode32()
    a("v_lshrrev_b32 %s, 8, %s" % (vr(t0), vr(vTT)))
    a("v_and_b32 %s, 0xff, %s" % (vr(vID), vr(vTT)))
    a("v_lshl_add_u32 %s, %s, 7, %s" % (vr(vID), vr(t0), vr(vID)))
    ids_to_soff()
    vQV = 32
    a("v_lshrrev_b32 %s, 4, v1" % vr(t0))
    a("v_and_b32 %s, 15, v1" % vr(t1))
    for p in range(4):
        a("v_lshl_or_b32 %s, %s, 2, %d" % (vr(t2), vr(t0), p))
        a("v_xor_b32 %s, %s, %s" % (vr(t2), vr(t2), vr(t1)))
        a("v_lshlrev_b32 %s, 4, %s" % (vr(t2), vr(t2)))
        a("v_lshl_add_u32 %s, %s, 8, %s" % (vr(vQV + p), vr(t0), vr(t2)))
    a("s_waitcnt lgkmcnt(0)")
    stamp()
    srd(SRDW, sQ, 65536)
    a("s_lshl_b32 s%d, s%d, 10" % (sT0, sG))
    for b in range(8):
        a("s_mov_b32 m0, %d" % (0x20000 + b * 1024))
        a("s_add_u32 s%d, s%d, %d" % (sT1, sT0, b * 8192))
        a("buffer_load_dwordx4 %s, %s, s%d offen lds" % (vr(vQV + (b & 3)), sq(SRDW), sT1))
    srd(SRDK, sK, KV_BYTES)
    srd(SRDV, sV, KV_BYTES)
    srd(SRDW, sWS, WS_SIZE)
    main_lines = a.l
    a.l = []
    a.lab("LD_generic")
    partition()
    a.lab("LD_round")
    decode32()
    a("v_lshlrev_b32 %s, 2, %s" % (vr(t0), vr(vTT)))
    a("s_nop 0")
    a("v_cndmask_b32 %s, 0, %s, vcc" % (vr(t0), vr(t0)))
    a("global_load_dword %s, %s, %s" % (vr(vID), vr(t0), sp(sBT)))
    a("s_waitcnt vmcnt(0)")
    ids_to_soff()
    a("s_nop 1")
    a("s_branch LD_issue")
    ldgen_lines = a.l
    a.l = main_lines
    a.lab("LD_issue")

    def rnd(r, waves=(0, 1, 2, 3)):
        srdx = SRDK if r < 4 else SRDV
        rr = r & 3
        base = sSOFF if (r & 1) == 0 else sJ16
        for wv in waves:
            for s in range(2):
                a("v_readlane_b32 s%d, %s, %d" % (base + 2 * wv + s, vr(vID), 8 * wv + 2 * rr + s))
        if len(waves) < 4:
            a("s_nop 1")
        for wv in waves:
            for s in range(2):
                a("s_mov_b32 m0, %d" % (wv * 32768 + (2 * rr + s) * 4096))
                a("s_nop 0")
                for p in range(4):
                    a("buffer_load_dwordx4 %s, %s, s%d offen offset:%d%s lds" % (
                        vr(vVOFF + p), sq(srdx), base + 2 * wv + s, 1024 * p, NT))

    rnd(0)
    rnd(1)
    rnd(2)
    a("s_waitcnt vmcnt(62)")
    stamp()
    a("s_barrier")
    rnd(3)
    a("s_waitcnt vmcnt(62)")
    stamp()
    a("s_barrier")
    rnd(4)
    a("s_waitcnt vmcnt(62)")
    stamp()
    a("s_barrier")
    rnd(5)
    a("s_waitcnt vmcnt(62)")
    stamp()
    a("s_barrier")
    rnd(6, (0, 1))
    stamp()
    a("s_barrier")
    a("v_mov_b32 %s, %d" % (vr(t0), 3 * 8192))
    a("v_mov_b32 %s, %d" % (vr(t1), 3 * 8192 + 65536))
    a("ds_read_b32 %s, %s" % (vr(t2), vr(t0)))
    a("ds_read_b32 %s, %s offset:32768" % (vr(t3), vr(t0)))
    a("ds_read_b32 %s, %s" % (vr(t4), vr(t1)))
    a("ds_read_b32 %s, %s offset:32768" % (vr(t5), vr(t1)))
    a("ds_read_b64 %s, %s offset:8" % (vr(vNON, 2), vr(t0)))
    a("s_waitcnt lgkmcnt(0)")
    a("v_readfirstlane_b32 s%d, %s" % (sNONCE, vr(vNON)))
    a("v_readfirstlane_b32 s%d, %s" % (sNONCE + 1, vr(vNON + 1)))
    a("v_or3_b32 %s, %s, %s, %s" % (vr(t2), vr(t2), vr(t3), vr(t4)))
    a("v_or_b32 %s, %s, %s" % (vr(t2), vr(t2), vr(t5)))
    a("s_nop 0")
    a("v_readfirstlane_b32 s%d, %s" % (sT0, vr(t2)))
    a("s_nop 1")
    a("s_cmp_lg_u32 s%d, 0" % sT0)
    a("s_cbranch_scc1 LD_fallback")
    rnd(6, (2, 3))
    rnd(7)
    a("s_waitcnt vmcnt(62)")
    stamp()
    a("s_barrier")
    sBt, sQD, sN1, sA2, sN, sKK, sB0, sB1, sGB, sSPIN, sCNT, sPEND = 64, 65, 66, 67, 68, 69, 70, 71, 72, 73, 74, 75
    sM = 76
    sHALF = 78
    sREC = 80
    sOUTB = 92
    sS1, sS2 = 93, 94
    SRDO = 20
    NP = NSLOT // 2
    vCST, vMO = 6, 8
    vMR, vLA, vOA, vNM, vSC, vRL = 10, 14, 18, 22, 26, 30
    vA0, vA1 = 34, 35
    vLW, vLR, vSL, vOB = 36, 37, 38, 39
    vAD = 40
    vY = 48
    vML = 240
    vD = 64
    vW = 96
    a("s_lshr_b32 s%d, s%d, 2" % (sBt, sI))
    a("s_and_b32 s%d, s%d, 3" % (sQD, sI))
    a("s_mov_b32 s%d, s%d" % (sB0, sB))
    a("s_mov_b32 s%d, s%d" % (sB1, sB + 1))
    for b in range(1, 8):
        a("s_cmp_eq_u32 s%d, %d" % (sBt, b))
        a("s_cselect_b32 s%d, s%d, s%d" % (sB0, sB + b, sB0))
        a("s_cselect_b32 s%d, s%d, s%d" % (sB1, sB + b + 1, sB1))
    a("v_lshlrev_b32 %s, 2, v1" % vr(vCST))
    a("v_mul_lo_u32 %s, %s, s%d" % (vr(vCST), vr(vCST), sU))
    a("v_lshrrev_b32 %s, s%d, %s" % (vr(vCST), sSH, vr(vCST)))
    a("s_sub_u32 s%d, s%d, 2" % (sT0, sSH))
    a("s_lshl_b32 s%d, 1, s%d" % (sT0, sT0))
    a("v_cmp_gt_u32 %s, s%d, v1" % (sp(sM), sT0))
    a("v_cmp_gt_u32 vcc, s%d, %s" % (sS, vr(vCST)))
    a("s_and_b64 vcc, vcc, %s" % sp(sM))
    a("s_bcnt1_i32_b64 s%d, vcc" % sN1)
    a("v_cmp_ge_u32 vcc, s%d, %s" % (sB0, vr(vCST)))
    a("s_and_b64 vcc, vcc, %s" % sp(sM))
    a("s_bcnt1_i32_b64 s%d, vcc" % sA2)
    a("s_sub_u32 s%d, s%d, 1" % (sA2, sA2))
    a("s_max_u32 s%d, s%d, s%d" % (sA2, sA2, sN1))
    a("v_cmp_gt_u32 vcc, s%d, %s" % (sB1, vr(vCST)))
    a("s_and_b64 vcc, vcc, %s" % sp(sM))
    a("s_bcnt1_i32_b64 s%d, vcc" % sT1)
    a("s_sub_i32 s%d, s%d, s%d" % (sT1, sT1, sA2))
    a("s_max_i32 s%d, s%d, 0" % (sT1, sT1))
    a("s_cmp_gt_u32 s%d, s%d" % (sB1, sB0))
    a("s_cselect_b32 s%d, s%d, 0" % (sT1, sT1))
    a("s_add_u32 s%d, s%d, s%d" % (sN, sN1, sT1))
    a("s_sub_u32 s%d, s%d, s%d" % (sA2, sA2, sN1))
    a("s_lshl_b32 s%d, s%d, 6" % (sGB, sG))
    a("v_and_b32 %s, 31, v1" % vr(vA0))
    a("v_lshrrev_b32 %s, 5, v1" % vr(vA1))
    a("s_mov_b32 s%d, 0" % sHALF)
    a("s_mov_b32 s%d, -1" % (sHALF + 1))
    a("v_lshlrev_b32 %s, 4, %s" % (vr(vOB), vr(vA0)))
    a("s_lshl_b32 s%d, s%d, 9" % (sT0, sQD))
    a("s_lshl_b32 s%d, s%d, 11" % (sT1, sBt))
    a("s_add_u32 s%d, s%d, s%d" % (sT0, sT0, sT1))
    a("s_add_u32 s%d, s%d, 0x%x" % (sT0, sT0, WS_O))
    a("v_add_u32 %s, s%d, %s" % (vr(vOB), sT0, vr(vOB)))
    a("v_lshlrev_b32 %s, 3, v1" % vr(vLW))
    a("v_lshlrev_b32 %s, 5, %s" % (vr(vLR), vr(vA1)))
    a("v_lshrrev_b32 %s, 2, v1" % vr(vSL))
    for k in range(4):
        a("v_mov_b32 %s, %s" % (vr(vMR + k), f32hex(-1e30)))
        a("v_mov_b32 %s, 0" % vr(vLA + k))
        a("v_mov_b32 %s, 0" % vr(vOA + k))
    a("s_mov_b32 s%d, 0" % sKK)
    a("s_mov_b32 s%d, 0x0c0c0004" % sS1)
    a("s_mov_b32 s%d, 0x04000c0c" % sS1)
    a("s_mov_b32 s%d, 0x0706000c" % sS2)
    a("s_lshl_b32 s%d, s%d, 13" % (sOUTB, sBt))
    a("s_lshl_b32 s%d, s%d, 10" % (sT1, sG))
    a("s_add_u32 s%d, s%d, s%d" % (sOUTB, sOUTB, sT1))
    a("s_lshl_b32 s%d, s%d, 6" % (sT1, sQD))
    a("s_add_u32 s%d, s%d, s%d" % (sOUTB, sOUTB, sT1))

    def recs():
        a("s_sub_u32 s%d, s%d, s%d" % (sCNT, sN, sKK))
        for p in range(NSLOT):
            a("s_add_u32 s%d, s%d, %d" % (sT0, sKK, p))
            a("s_cmp_gt_u32 s%d, %d" % (sCNT, p))
            a("s_cselect_b32 s%d, s%d, s%d" % (sT0, sT0, sKK))
            a("s_add_u32 s%d, s%d, s%d" % (sT1, sT0, sA2))
            a("s_cmp_lt_u32 s%d, s%d" % (sT0, sN1))
            a("s_cselect_b32 s%d, s%d, s%d" % (sT0, sT0, sT1))
            a("s_add_u32 s%d, s%d, s%d" % (sT0, sT0, sGB))
            a("s_lshl_b32 s%d, s%d, 14" % (sREC + p, sT0))
        for j in range(NP):
            a("v_mov_b32 %s, s%d" % (vr(vY), sREC + 2 * j))
            a("v_mov_b32 %s, s%d" % (vr(vY + 1), sREC + 2 * j + 1))
            a("v_cndmask_b32 %s, %s, %s, %s" % (vr(vY), vr(vY), vr(vY + 1), sp(sHALF)))
            a("v_add_u32 %s, %s, %s" % (vr(vAD + j), vr(vY), vr(vOB)))
        a("v_add_u32 %s, s%d, %s" % (vr(vY), sKK, vr(vSL)))
        a("v_mov_b32 %s, s%d" % (vr(vY + 1), sKK))
        a("v_cmp_gt_u32 vcc, s%d, %s" % (sCNT, vr(vSL)))
        a("v_cmp_gt_u32 %s, %d, %s" % (sp(sM), NSLOT, vr(vSL)))
        a("s_and_b64 vcc, vcc, %s" % sp(sM))
        a("s_nop 1")
        a("v_cndmask_b32 %s, %s, %s, vcc" % (vr(vY), vr(vY + 1), vr(vY)))
        a("v_add_u32 %s, s%d, %s" % (vr(vY + 1), sA2, vr(vY)))
        a("v_cmp_gt_u32 vcc, s%d, %s" % (sN1, vr(vY)))
        a("s_nop 1")
        a("v_cndmask_b32 %s, %s, %s, vcc" % (vr(vY), vr(vY + 1), vr(vY)))
        a("v_add_u32 %s, s%d, %s" % (vr(vY), sGB, vr(vY)))
        a("v_lshlrev_b32 %s, 11, %s" % (vr(vY), vr(vY)))
        a("v_and_b32 %s, 3, v1" % vr(vY + 1))
        a("v_lshl_add_u32 %s, %s, 4, %s" % (vr(vY), vr(vY + 1), vr(vY)))
        a("s_lshl_b32 s%d, s%d, 8" % (sT0, sBt))
        a("s_add_u32 s%d, s%d, 0x%x" % (sT0, sT0, WS_ML))
        a("v_add_u32 %s, s%d, %s" % (vr(vMO), sT0, vr(vY)))
    recs()
    a("v_lshlrev_b32 %s, 9, %s" % (vr(vA1), vr(vA1)))
    a("v_lshl_add_u32 %s, %s, 1, %s" % (vr(vA1), vr(vA0), vr(vA1)))
    a("s_waitcnt vmcnt(32)")
    stamp()
    a("s_barrier")

    def ml_loads():
        for w in range(4):
            a("buffer_load_dwordx4 %s, %s, %s, 0 offen offset:%d sc1" % (vr(vML + 4 * w, 4), vr(vMO), sq(SRDW), 64 * w))
    ml_loads()
    a("s_waitcnt vmcnt(4)")
    stamp(True)
    a("s_barrier")
    a("s_waitcnt vmcnt(0)")
    a("s_add_u32 s%d, s%d, 1" % (sR, sR))
    a("s_cmp_ge_u32 s%d, s%d" % (sR, sNR))
    a("s_cbranch_scc1 LD_combine")
    a("s_barrier")
    a("s_branch LD_round")
    a.lab("LD_fallback")
    a("s_waitcnt vmcnt(0) lgkmcnt(0)")
    a("s_barrier")
    a("s_branch LD_generic")

    a.lab("LD_combine")
    a("s_mov_b32 s%d, %s" % (sT3, f32hex(SCALE_LOG2)))
    a("s_mov_b32 s%d, 0" % sSPIN)
    a("s_branch L_chkml")
    a.lab("L_cbatch")
    a("s_mov_b32 s%d, 0" % sSPIN)
    a.lab("L_pollml")
    ml_loads()
    a("s_waitcnt vmcnt(0)")
    a.lab("L_chkml")
    a("v_cmp_eq_u64 vcc, %s, %s" % (sp(sNONCE), vr(vML + 2, 2)))
    for w in range(1, 4):
        a("v_cmp_eq_u64 %s, %s, %s" % (sp(sM), sp(sNONCE), vr(vML + 4 * w + 2, 2)))
        a("s_and_b64 vcc, vcc, %s" % sp(sM))
    a("s_or_b32 vcc_hi, vcc_hi, 0x%x" % (0xffffffff & ~((1 << (4 * NSLOT - 32)) - 1)))
    a("s_cmp_eq_u64 vcc, -1")
    a("s_cbranch_scc1 L_mlok")
    a("s_add_u32 s%d, s%d, 1" % (sSPIN, sSPIN))
    a("s_cmp_gt_u32 s%d, 0x40000" % sSPIN)
    a("s_cbranch_scc1 L_end")
    a("s_branch L_pollml")
    a.lab("L_mlok")
    a("v_cmp_gt_u32 vcc, s%d, %s" % (sCNT, vr(vSL)))
    a("v_add_f32 %s, %s, %s" % (vr(vML + 1), vr(vML + 1), vr(vML + 5)))
    a("v_add_f32 %s, %s, %s" % (vr(vML + 9), vr(vML + 9), vr(vML + 13)))
    a("v_mov_b32 %s, %s" % (vr(vY), f32hex(-1e30)))
    a("v_add_f32 %s, %s, %s" % (vr(vML + 1), vr(vML + 1), vr(vML + 9)))
    a("v_cndmask_b32 %s, %s, %s, vcc" % (vr(vML), vr(vY), vr(vML)))
    a("v_cndmask_b32 %s, 0, %s, vcc" % (vr(vML + 1), vr(vML + 1)))
    a("ds_write_b64 %s, %s" % (vr(vLW), vr(vML, 2)))
    stamp()
    for j in range(NP):
        a("ds_read_b128 %s, %s offset:%d" % (vr(vW + 8 * j, 4), vr(vLR), j * 64))
        a("ds_read_b128 %s, %s offset:%d" % (vr(vW + 8 * j + 4, 4), vr(vLR), j * 64 + 16))
    a("s_waitcnt lgkmcnt(0)")
    Mreg = lambda j, h: vW + 8 * j + 2 * h
    lreg = lambda j, h: vW + 8 * j + 2 * h + 1
    for h in range(4):
        a("v_max3_f32 %s, %s, %s, %s" % (vr(vNM + h), vr(vMR + h), vr(Mreg(0, h)), vr(Mreg(1, h))))
    for j in range(2, NP, 2):
        for h in range(4):
            a("v_max3_f32 %s, %s, %s, %s" % (vr(vNM + h), vr(vNM + h), vr(Mreg(j, h)), vr(Mreg(j + 1, h))))
    for h in range(4):
        a("v_mov_b32 %s, %s" % (vr(vY + h), vr(vNM + h)))
    a("s_nop 1")
    for h in range(4):
        a("v_permlane32_swap_b32 %s, %s" % (vr(vNM + h), vr(vY + h)))
    a("s_nop 1")
    for h in range(4):
        a("v_max_f32 %s, %s, %s" % (vr(vNM + h), vr(vNM + h), vr(vY + h)))
    for h in range(4):
        a("v_mul_f32 %s, %s, %s" % (vr(vRL + h), f32hex(-SCALE_LOG2), vr(vNM + h)))
    for h in range(4):
        a("v_fma_f32 %s, %s, s%d, %s" % (vr(vSC + h), vr(vMR + h), sT3, vr(vRL + h)))
    for j in range(NP):
        for h in range(4):
            a("v_fma_f32 %s, %s, s%d, %s" % (vr(Mreg(j, h)), vr(Mreg(j, h)), sT3, vr(vRL + h)))
    for h in range(4):
        a("v_exp_f32 %s, %s" % (vr(vSC + h), vr(vSC + h)))
    for j in range(NP):
        for h in range(4):
            a("v_exp_f32 %s, %s" % (vr(Mreg(j, h)), vr(Mreg(j, h))))
    for h in range(4):
        a("v_mul_f32 %s, %s, %s" % (vr(vOA + h), vr(vOA + h), vr(vSC + h)))
        a("v_mul_f32 %s, %s, %s" % (vr(vLA + h), vr(vLA + h), vr(vSC + h)))
        a("v_mov_b32 %s, %s" % (vr(vMR + h), vr(vNM + h)))
    for h in range(4):
        a("v_mul_f32 %s, %s, %s" % (vr(vNM + h), vr(Mreg(0, h)), vr(lreg(0, h))))
    for j in range(1, NP):
        for h in range(4):
            a("v_fma_f32 %s, %s, %s, %s" % (vr(vNM + h), vr(Mreg(j, h)), vr(lreg(j, h)), vr(vNM + h)))
    for h in range(4):
        a("v_mov_b32 %s, %s" % (vr(vY + h), vr(vNM + h)))
    a("s_nop 1")
    for h in range(4):
        a("v_permlane32_swap_b32 %s, %s" % (vr(vNM + h), vr(vY + h)))
    a("s_nop 1")
    for h in range(4):
        a("v_add_f32 %s, %s, %s" % (vr(vNM + h), vr(vNM + h), vr(vY + h)))
    for h in range(4):
        a("v_add_f32 %s, %s, %s" % (vr(vLA + h), vr(vLA + h), vr(vNM + h)))
    for h in range(4):
        a("v_rcp_f32 %s, %s" % (vr(vRL + h), vr(vLA + h)))
    a("s_mov_b32 s%d, s%d" % (SRDO, sOUT))
    a("s_and_b32 s%d, s%d, 0xffff" % (SRDO + 1, sOUT + 1))
    a("s_mov_b32 s%d, 0x10000" % (SRDO + 2))
    a("s_mov_b32 s%d, 0x20000" % (SRDO + 3))
    a("s_mov_b32 s%d, 0" % sSPIN)
    a("s_add_u32 s%d, s%d, 1" % (sT0, sCNT))
    a("s_lshr_b32 s%d, s%d, 1" % (sT0, sT0))
    a("s_min_u32 s%d, s%d, %d" % (sT0, sT0, NP))
    a("s_lshl_b32 s%d, 1, s%d" % (sT0, sT0))
    a("s_sub_u32 s%d, s%d, 1" % (sPEND, sT0))
    a("s_mov_b32 s%d, s%d" % (sB0, sPEND))
    for _ in range(OPT.get("odelay", 0)):
        a("s_sleep 8")
    a.lab("L_pollo")
    for j in range(NP):
        a("s_bitcmp1_b32 s%d, %d" % (sPEND, j))
        a("s_cbranch_scc0 L_noload%d" % j)
        a("buffer_load_dwordx4 %s, %s, %s, 0 offen sc1" % (vr(vD + 4 * j, 4), vr(vAD + j), sq(SRDW)))
        a.lab("L_noload%d" % j)
    a("s_waitcnt vmcnt(0)")
    for j in range(NP):
        a("v_cmp_eq_u32 vcc, s%d, %s" % (sNONCE, vr(vD + 4 * j + 3)))
        a("s_cmp_eq_u64 vcc, -1")
        a("s_cselect_b32 s%d, 0x%x, -1" % (sT0, 0xffffffff & ~(1 << j)))
        a("s_and_b32 s%d, s%d, s%d" % (sPEND, sPEND, sT0))
    a("s_cmp_eq_u32 s%d, 0" % sPEND)
    a("s_cbranch_scc1 L_ook")
    a("s_add_u32 s%d, s%d, 1" % (sSPIN, sSPIN))
    a("s_cmp_gt_u32 s%d, 0x40000" % sSPIN)
    a("s_cbranch_scc1 L_end")
    a("s_branch L_pollo")
    a.lab("L_ook")
    stamp()
    for j in range(NP):
        d = vD + 4 * j
        if j >= 1:
            a("s_bitcmp1_b32 s%d, %d" % (sB0, j))
            a("s_cbranch_scc0 L_accdone")
        a("v_perm_b32 %s, %s, %s, s%d" % (vr(d + 3), vr(d), vr(d + 1), sS1))
        a("v_fma_f32 %s, %s, %s, %s" % (vr(vOA), vr(Mreg(j, 0)), vr(d), vr(vOA)))
        a("v_perm_b32 %s, %s, %s, s%d" % (vr(d + 3), vr(d + 3), vr(d + 2), sS2))
        a("v_fma_f32 %s, %s, %s, %s" % (vr(vOA + 1), vr(Mreg(j, 1)), vr(d + 1), vr(vOA + 1)))
        a("v_fma_f32 %s, %s, %s, %s" % (vr(vOA + 2), vr(Mreg(j, 2)), vr(d + 2), vr(vOA + 2)))
        a("v_fma_f32 %s, %s, %s, %s" % (vr(vOA + 3), vr(Mreg(j, 3)), vr(d + 3), vr(vOA + 3)))
    a.lab("L_accdone")
    a("s_add_u32 s%d, s%d, %d" % (sKK, sKK, NSLOT))
    a("s_cmp_lt_u32 s%d, s%d" % (sKK, sN))
    a("s_cbranch_scc0 L_final")
    recs()
    a("s_branch L_cbatch")
    a.lab("L_final")
    for h in range(4):
        a("v_mov_b32 %s, %s" % (vr(vY + h), vr(vOA + h)))
    a("s_nop 1")
    for h in range(4):
        a("v_permlane32_swap_b32 %s, %s" % (vr(vOA + h), vr(vY + h)))
    a("s_nop 1")
    for h in range(4):
        a("v_add_f32 %s, %s, %s" % (vr(vOA + h), vr(vOA + h), vr(vY + h)))
    for h in range(4):
        a("v_mul_f32 %s, %s, %s" % (vr(vOA + h), vr(vOA + h), vr(vRL + h)))
    a("v_cndmask_b32 %s, %s, %s, %s" % (vr(vY), vr(vOA), vr(vOA + 2), sp(sHALF)))
    a("v_cndmask_b32 %s, %s, %s, %s" % (vr(vY + 1), vr(vOA + 1), vr(vOA + 3), sp(sHALF)))
    a("v_cvt_pk_bf16_f32 %s, %s, %s" % (vr(vY), vr(vY), vr(vY + 1)))
    a("buffer_store_short %s, %s, %s, s%d offen" % (vr(vY), vr(vA1), sq(SRDO), sOUTB))
    a("buffer_store_short_d16_hi %s, %s, %s, s%d offen offset:256" % (vr(vY), vr(vA1), sq(SRDO), sOUTB))
    if OPT["stamps"]:
        a("s_waitcnt vmcnt(0)")
        stamp(True)
        stampout(5)
    a.lab("L_end")
    a("s_endpgm")
    a.l = entry_lines + a.l + ldgen_lines + compute_lines


def build():
    a = A()
    kernel(a)
    s = HEADER
    s += "; @launch grid=(256,1,1) block=(320,1,1) lds=163840\n"
    s += '.amdgcn_target "amdgcn-amd-amdhsa--gfx950"\n.text\n'
    k = NAME + "_kernel"
    s += ".globl %s\n.p2align 8\n.type %s,@function\n" % (k, k) + a.text()
    s += """.section .rodata,"a"
.p2align 6
.amdhsa_kernel %s
  .amdhsa_next_free_vgpr 256
  .amdhsa_next_free_sgpr 102
  .amdhsa_accum_offset 256
  .amdhsa_group_segment_fixed_size 0
  .amdhsa_kernarg_size 64
  .amdhsa_user_sgpr_count 2
  .amdhsa_user_sgpr_kernarg_segment_ptr 1
  .amdhsa_system_sgpr_workgroup_id_x 1
.end_amdhsa_kernel
""" % k
    return s


if __name__ == "__main__":
    args = sys.argv[1:]
    for x in list(args):
        if x.startswith("--"):
            k = x[2:]
            if k.startswith("odelay="):
                OPT["odelay"] = int(k[7:])
            elif k == "light":
                OPT["light"] = True
                OPT["stamps"] = True
            elif k.startswith("perm="):
                OPT["perm"] = [int(c) for c in k[5:]]
            elif k.startswith("no"):
                OPT[k[2:]] = False
            else:
                OPT[k] = True
            args.remove(x)
    open(args[0] if args else "cdna_kernels/%s.s" % NAME, "w").write(build())
```

```python
import struct
import sys

NAME = "standalone__paged_block_table_kv_radixattention__sampling"

HEADER = """; Kernarg layout for this problem (64 bytes, ptrs only, base s[0:1]):
"""

NPHYS = 1152
KV_BYTES = NPHYS * 32768
WS_STAMP = 512 << 10
WS_O = 1 << 20
WS_ML = 17 << 20
WS_SIZE = 18 << 20
SCALE_LOG2 = 0.08838834764831845 * 1.4426950408889634
PRED_CTX = [4096 - (i * 2654435761) % 1024 for i in range(1, 9)]
PRED_S = 128
NSLOT = 12

OPT = dict(stamps=False, nt=True, prewarm=True)


def f32hex(x):
    return "0x%08x" % struct.unpack("<I", struct.pack("<f", x))[0]


class A:
    def __init__(self):
        self.l = []
        self.nstamp = 0

    def __call__(self, s):
        self.l.append("    " + s)

    def lab(self, s):
        self.l.append(s + ":")

    def c(self, s):
        self.l.append("    ; " + s)

    def text(self):
        return "\n".join(self.l) + "\n"


def vr(a, n=1):
    return "v%d" % a if n == 1 else "v[%d:%d]" % (a, a + n - 1)


def sp(a):
    return "s[%d:%d]" % (a, a + 1)


def sq(a):
    return "s[%d:%d]" % (a, a + 3)


def kernel(a):
    sMODE = 3
    sQ, sK, sV, sBT, sCTX, sOUT, sDBG, sWS = 4, 6, 8, 10, 12, 14, 16, 18
    sNONCE = 6
    sBAD = 8
    sDRY = 3
    sQRD = 9
    SRDK, SRDV, SRDW = 20, 24, 28
    sC = 32
    sB = 40
    sD = 49
    sSTP = 0
    sG, sI, sW, sS, sSH, sNR, sR = 57, 58, 59, 60, 61, 62, 63
    sSOFF = 64
    sJ16 = 72
    sMK = 80
    sT0, sT1, sT2, sT3 = 96, 97, 98, 99
    sWB, sCH = 100, 101
    sU = sB + 8
    vVOFF = 2
    vKA = 6
    vVA = 14
    vPW, vPR = 18, 19
    vCTXH, vCTXR = 20, 21
    vLIM = 22
    vMAX, vNINF = 30, 31
    vQ = 32
    vS = 64
    vKF = 128
    vVF = 160
    vT = 160
    vTMP = 192
    vONE = 208
    vOOFF = 212
    vX, vOFF, vTT, vM32, vJ, vID = 213, 214, 215, 216, 217, 218
    vNMC = 219
    vNON = 220
    vZERO = 222
    vN2 = 228
    vNOFF = 221
    vST = 223
    vACO = 224
    vACL = 240
    t0, t1, t2, t3, t4, t5 = (vTMP + k for k in range(6))
    NT = " nt" if OPT["nt"] else ""

    def stamp(final=False):
        if not OPT["stamps"]:
            return
        if OPT.get("light") and not final:
            a.nstamp += 1
            return
        a("s_memrealtime %s" % sp(sSTP))
        a("s_waitcnt lgkmcnt(0)")
        a("v_writelane_b32 %s, s%d, %d" % (vr(vST), sSTP, a.nstamp))
        a.nstamp += 1

    def chain():
        a("v_mov_b32 %s, 0" % vr(vOFF))
        for b in range(1, 8):
            a("v_cmpx_le_u32 vcc, s%d, %s" % (sB + b, vr(vX)))
            a("v_mov_b32 %s, s%d" % (vr(vOFF), sD + b))
        a("s_mov_b64 exec, -1")
        a("v_add_u32 %s, %s, %s" % (vr(vTT), vr(vX), vr(vOFF)))

    def chunk_index():
        a("s_lshl_b32 s%d, s%d, 5" % (sT0, sR))
        a("s_add_u32 s%d, s%d, s%d" % (sCH, sI, sT0))

    def decode8():
        chunk_index()
        a("s_lshl2_add_u32 s%d, s%d, s%d" % (sT0, sCH, sW))
        a("s_mul_i32 s%d, s%d, s%d" % (sT1, sT0, sU))
        a("s_add_u32 s%d, s%d, s%d" % (sT2, sT1, sU))
        a("s_lshr_b32 s%d, s%d, s%d" % (sT1, sT1, sSH))
        a("s_lshr_b32 s%d, s%d, s%d" % (sT2, sT2, sSH))
        a("v_add_u32 %s, s%d, v1" % (vr(vX), sT1))
        chain()
        a("v_cmp_gt_u32 vcc, s%d, %s" % (sT2, vr(vX)))

    def decode32():
        chunk_index()
        a("s_lshl_b32 s%d, s%d, 2" % (sT0, sCH))
        a("v_lshrrev_b32 %s, 3, v1" % vr(t0))
        a("v_add_u32 %s, s%d, %s" % (vr(t0), sT0, vr(t0)))
        a("v_mul_u32_u24 %s, s%d, %s" % (vr(t0), sU, vr(t0)))
        a("v_add_u32 %s, s%d, %s" % (vr(t1), sU, vr(t0)))
        a("v_lshrrev_b32 %s, s%d, %s" % (vr(t0), sSH, vr(t0)))
        a("v_lshrrev_b32 %s, s%d, %s" % (vr(t1), sSH, vr(t1)))
        a("v_and_b32 %s, 7, v1" % vr(t2))
        a("v_add_u32 %s, %s, %s" % (vr(vX), vr(t0), vr(t2)))
        chain()
        a("v_cmp_gt_u32 vcc, %s, %s" % (vr(t1), vr(vX)))

    def maskinfo():
        a("v_and_b32 %s, 0xff, %s" % (vr(vJ), vr(vTT)))
        a("v_lshlrev_b32 %s, 4, %s" % (vr(vJ), vr(vJ)))
        a("v_lshrrev_b32 %s, 8, %s" % (vr(t1), vr(vTT)))
        a("v_lshlrev_b32 %s, 2, %s" % (vr(t1), vr(t1)))
        a("v_lshlrev_b32_e64 %s, %s, 15" % (vr(vM32), vr(t1)))
        a("v_cmp_gt_u32 %s, s%d, %s" % (sp(sMK), sS, vr(vX)))
        a("v_mov_b32 %s, -1" % vr(t1))
        a("s_nop 0")
        a("v_cndmask_b32 %s, %s, %s, %s" % (vr(vM32), vr(vM32), vr(t1), sp(sMK)))
        a("v_cndmask_b32 %s, 0, %s, vcc" % (vr(vM32), vr(vM32)))

    def ids_to_soff():
        a("v_mov_b32 %s, 0x%x" % (vr(t1), NPHYS))
        a("v_min_u32 %s, 0x%x, %s" % (vr(vID), NPHYS, vr(vID)))
        a("v_cndmask_b32 %s, %s, %s, vcc" % (vr(vID), vr(t1), vr(vID)))
        a("v_lshlrev_b32 %s, 15, %s" % (vr(vID), vr(vID)))

    def partition():
        vTO = vTMP + 8
        a("s_mov_b32 s%d, 0" % sBAD)
        a("s_load_dwordx8 s[%d:%d], %s, 0" % (sC, sC + 7, sp(sCTX)))
        a("v_lshlrev_b32 %s, 4, v1" % vr(vTO))
        a("v_add_u32 %s, 0x1000, %s" % (vr(vTO + 1), vr(vTO)))
        for b in range(8):
            a("global_load_dwordx4 %s, %s, %s offset:%d" % (
                vr(vT + 4 * b, 4), vr(vTO if b < 4 else vTO + 1), sp(sBT), (b & 3) * 1024))
        a("s_waitcnt lgkmcnt(0)")
        for b in range(8):
            a("s_cmp_lt_i32 s%d, 1" % (sC + b))
            a("s_cselect_b32 s%d, 0x1000, s%d" % (sC + b, sC + b))
            a("s_min_i32 s%d, s%d, 0x1000" % (sC + b, sC + b))
            a("s_add_i32 s%d, s%d, 15" % (sC + b, sC + b))
            a("s_lshr_b32 s%d, s%d, 4" % (sC + b, sC + b))
        a("s_max_u32 s%d, s%d, s%d" % (sT0, sC, sC + 1))
        for b in range(2, 8):
            a("s_max_u32 s%d, s%d, s%d" % (sT0, sT0, sC + b))
        a("s_waitcnt vmcnt(0)")
        for c in range(4):
            a("v_sad_u32 %s, %s, %s, 0" % (vr(t0 + c), vr(vT + 4 + c), vr(vT + c)))
        for b in range(2, 8):
            for c in range(4):
                a("v_sad_u32 %s, %s, %s, %s" % (vr(t0 + c), vr(vT + 4 * b + c), vr(vT + c), vr(t0 + c)))
        for c in range(4):
            a("v_cmp_ne_u32 %s, 0, %s" % (sp(sMK + 2 * c), vr(t0 + c)))
        a("s_nop 3")
        for c in range(4):
            a("s_ff1_i32_b64 s%d, %s" % (sJ16 + c, sp(sMK + 2 * c)))
            a("s_lshl2_add_u32 s%d, s%d, %d" % (sJ16 + c, sJ16 + c, c))
        a("s_min_u32 s%d, s%d, s%d" % (sS, sJ16, sJ16 + 1))
        a("s_min_u32 s%d, s%d, s%d" % (sS, sS, sJ16 + 2))
        a("s_min_u32 s%d, s%d, s%d" % (sS, sS, sJ16 + 3))
        a("s_min_u32 s%d, s%d, s%d" % (sS, sS, sT0))
        a("s_mov_b32 s%d, s%d" % (sB, sS))
        for b in range(8):
            a("s_sub_i32 s%d, s%d, s%d" % (sT1, sC + b, sS))
            a("s_max_i32 s%d, s%d, 0" % (sT1, sT1))
            a("s_add_u32 s%d, s%d, s%d" % (sB + b + 1, sB + b, sT1))
            if b >= 1:
                a("s_sub_u32 s%d, s%d, s%d" % (sD + b, sS, sB + b))
                a("s_add_u32 s%d, s%d, %d" % (sD + b, sD + b, 256 * b))
        a("s_cmp_gt_u32 s%d, 1024" % sU)
        a("s_cselect_b32 s%d, 8, 7" % sSH)
        a("s_cselect_b32 s%d, 2, 1" % sNR)
        a("s_mov_b32 s%d, 0" % sR)

    def srd(dst, p, n):
        a("s_mov_b32 s%d, s%d" % (dst, p))
        a("s_and_b32 s%d, s%d, 0xffff" % (dst + 1, p + 1))
        a("s_mov_b32 s%d, 0x%x" % (dst + 2, n))
        a("s_mov_b32 s%d, 0x20000" % (dst + 3))

    def nonce_wait(tag):
        a("s_mov_b32 s%d, 0" % sT3)
        a.lab("L_noncewait" + tag)
        a("v_readfirstlane_b32 s%d, %s" % (sNONCE, vr(vN2)))
        a("v_readfirstlane_b32 s%d, %s" % (sNONCE + 1, vr(vN2 + 1)))
        a("s_nop 1")
        a("s_cmp_lg_u32 s%d, 0" % sNONCE)
        a("s_cbranch_scc1 L_nonceok" + tag)
        a("s_add_u32 s%d, s%d, 1" % (sT3, sT3))
        a("s_cmp_gt_u32 s%d, 0x100000" % sT3)
        a("s_cbranch_scc1 L_nonceok" + tag)
        a("s_sleep 2")
        a("global_load_dwordx2 %s, %s, %s sc1" % (vr(vN2, 2), vr(vNOFF), sp(sDBG)))
        a("s_waitcnt vmcnt(0)")
        a("s_branch L_noncewait" + tag)
        a.lab("L_nonceok" + tag)

    def stampout(nw):
        a("s_mul_i32 s96, s2, 5")
        a("s_add_u32 s96, s96, s%d" % sW)
        a("s_lshl_b32 s96, s96, 6")
        a("s_add_u32 s96, s96, 0x%x" % WS_STAMP)
        a("v_lshlrev_b32 %s, 2, v1" % vr(t0))
        a("s_mov_b64 exec, 0xffff")
        a("buffer_store_dword %s, %s, %s, s96 offen" % (vr(vST), vr(t0), sq(SRDW)))
        a("s_endpgm")

    a.lab(NAME + "_kernel")
    a("s_cmp_ge_u32 s2, 256")
    a("s_cbranch_scc1 L_end")
    a("s_load_dwordx16 s[4:19], s[0:1], 0")
    a("v_and_b32 v1, 63, v0")
    a("v_lshrrev_b32 v2, 6, v0")
    a("s_and_b32 s%d, s2, 7" % sG)
    if OPT.get("perm"):
        packed = 0
        for x, g in enumerate(OPT["perm"]):
            packed |= g << (4 * x)
        a("s_lshl_b32 s%d, s%d, 2" % (sG, sG))
        a("s_lshr_b32 s%d, 0x%x, s%d" % (sG, packed, sG))
        a("s_and_b32 s%d, s%d, 7" % (sG, sG))
    a("s_lshr_b32 s%d, s2, 3" % sI)
    a("v_readfirstlane_b32 s%d, v2" % sW)
    if OPT["stamps"]:
        a("v_mov_b32 %s, 0" % vr(vST))
        a("s_memrealtime %s" % sp(96))
        a("s_waitcnt lgkmcnt(0)")
        a("v_writelane_b32 %s, s96, 0" % vr(vST))
        a.nstamp = 1
    a.c("predicted partition (verified against the real table / lengths below)")
    nb = [(c + 15) // 16 for c in PRED_CTX]
    B = [PRED_S]
    for b in range(8):
        B.append(B[-1] + max(nb[b] - PRED_S, 0))
    a("s_mov_b32 s%d, %d" % (sS, PRED_S))
    for k in range(9):
        a("s_mov_b32 s%d, %d" % (sB + k, B[k]))
    for b in range(1, 8):
        a("s_mov_b32 s%d, %d" % (sD + b, PRED_S - B[b] + 256 * b))
    a("s_mov_b32 s%d, 7" % sSH)
    a("s_mov_b32 s%d, 1" % sNR)
    a("s_mov_b32 s%d, 0" % sR)
    a("s_mov_b32 s%d, 0" % sDRY)
    a("v_mov_b32 %s, 0" % vr(vZERO))
    a("s_cmp_lg_u32 s%d, 4" % sW)
    a("s_cbranch_scc1 C_entry")
    entry_lines = a.l
    a.l = []

    a.lab("C_entry")
    st0 = a.nstamp
    if OPT.get("skipcompute"):
        a("v_mov_b32 %s, 0" % vr(t0))
        a("s_lshl_b32 s%d, s%d, 15" % (sT0, sW))
        a("s_add_u32 s%d, s%d, %d" % (sT0, sT0, 3 * 8192))
        a("v_mov_b32 %s, s%d" % (vr(t1), sT0))
        for k in range(4):
            a("s_barrier")
        a("ds_write_b32 %s, %s" % (vr(t1), vr(t0)))
        a("s_waitcnt lgkmcnt(0)")
        for k in range(4):
            a("s_barrier")
        a("s_endpgm")
    a("s_lshl_b32 s%d, s%d, 15" % (sWB, sW))
    decode8()
    maskinfo()
    vTO, vQO, vCO = vTMP + 8, vTMP + 10, vTMP + 11
    a("v_lshlrev_b32 %s, 4, v1" % vr(vTO))
    a("s_lshl_b32 s%d, s%d, 11" % (sT0, sW))
    a("v_add_u32 %s, s%d, %s" % (vr(vTO), sT0, vr(vTO)))
    a("v_bfe_u32 %s, v1, 2, 3" % vr(t0))
    a("v_lshlrev_b32 %s, 2, %s" % (vr(vCO), vr(t0)))
    a("v_and_b32 %s, 31, v1" % vr(t0))
    a("v_lshrrev_b32 %s, 5, v1" % vr(t1))
    a("v_lshlrev_b32 %s, 4, %s" % (vr(t0), vr(t0)))
    a("v_lshl_add_u32 %s, %s, 11, %s" % (vr(t0), vr(t1), vr(t0)))
    a("s_lshl_b32 s%d, s%d, 9" % (sT1, sW))
    a("v_add_u32 %s, s%d, %s" % (vr(vOOFF), sT1, vr(t0)))
    a("s_waitcnt lgkmcnt(0)")
    stamp()
    a("s_load_dwordx8 s[%d:%d], %s, 0" % (sC, sC + 7, sp(sCTX)))
    a("global_load_dword %s, %s, %s" % (vr(vCTXR), vr(vCO), sp(sCTX)))
    vTS = 236
    for r in range(2):
        a("global_load_dwordx4 %s, %s, %s offset:%d" % (vr(vTS + 4 * r, 4), vr(vTO), sp(sBT), r * 1024))
    srd(SRDW, sWS, WS_SIZE)
    a("s_mov_b32 s%d, 0" % sQRD)
    if OPT["prewarm"]:
        a.c("address-translation warm-up for the record area and the output")
        a("s_lshl_b32 s%d, s%d, 6" % (sT0, sG))
        a("s_add_u32 s%d, s%d, s%d" % (sT0, sT0, sI))
        a("s_lshl_b32 s%d, s%d, 15" % (sT1, sT0))
        a("s_add_u32 s%d, s%d, 0x%x" % (sT1, sT1, WS_O))
        a("s_lshl_b32 s%d, s%d, 11" % (sT2, sT0))
        a("s_add_u32 s%d, s%d, 0x%x" % (sT2, sT2, WS_ML))
        a("buffer_load_dword %s, %s, %s, s%d offen" % (vr(vACO), vr(vZERO), sq(SRDW), sT1))
        a("buffer_load_dword %s, %s, %s, s%d offen" % (vr(vACO + 1), vr(vZERO), sq(SRDW), sT2))
        a("global_load_dword %s, %s, %s" % (vr(vACO + 2), vr(vZERO), sp(sOUT)))
    a.c("nonce: workgroup 0 / wave 0 publishes a per-launch tag in d_debug")
    a("s_or_b32 s%d, s2, s%d" % (sT0, sW))
    a("s_cmp_lg_u32 s%d, 0" % sT0)
    a("s_cbranch_scc1 L_nononce")
    a("s_memrealtime %s" % sp(96))
    a("s_waitcnt lgkmcnt(0)")
    a("s_or_b32 s96, s96, 1")
    a("v_mov_b32 %s, s96" % vr(t0))
    a("v_mov_b32 %s, s97" % vr(t1))
    a("v_lshlrev_b32 %s, 6, v1" % vr(t2))
    a("s_mov_b64 exec, 15")
    a("global_store_dwordx2 %s, %s, %s sc1" % (vr(t2), vr(t0, 2), sp(sDBG)))
    a("s_mov_b64 exec, -1")
    a.lab("L_nononce")
    a("s_and_b32 s%d, s%d, 3" % (sT0, sI))
    a("s_lshl_b32 s%d, s%d, 6" % (sT0, sT0))
    a("v_mov_b32 %s, s%d" % (vr(vNOFF), sT0))
    a.c("remaining lane constants")
    a("v_and_b32 %s, 31, v1" % vr(t0))
    a("v_lshrrev_b32 %s, 5, v1" % vr(t1))
    a("v_and_b32 %s, 3, v1" % vr(t2))
    a("v_bfe_u32 %s, v1, 2, 2" % vr(vTMP + 6))
    a("v_lshl_or_b32 %s, %s, 2, %s" % (vr(t2), vr(t2), vr(vTMP + 6)))
    a("v_xor_b32 %s, %s, %s" % (vr(t2), vr(t2), vr(t1)))
    a("v_lshlrev_b32 %s, 4, %s" % (vr(t2), vr(t2)))
    a("v_lshl_add_u32 %s, %s, 8, %s" % (vr(t2), vr(t0), vr(t2)))
    a("v_add_u32 %s, s%d, %s" % (vr(vKA), sWB, vr(t2)))
    for s in range(1, 8):
        a("v_xor_b32 %s, %d, %s" % (vr(vKA + s), s << 5, vr(vKA)))
    u0, u1, u2, u3, u4, u5 = (vLIM + k for k in range(6))
    a("v_bfe_u32 %s, v1, 2, 2" % vr(u0))
    a("v_lshrrev_b32 %s, 5, v1" % vr(u1))
    a("v_bfe_u32 %s, v1, 4, 1" % vr(u2))
    a("v_bfe_u32 %s, v1, 1, 1" % vr(u3))
    a("v_lshl_or_b32 %s, %s, 1, %s" % (vr(u2), vr(u2), vr(u3)))
    a("s_lshl_b32 s%d, s%d, 2" % (sT1, sW))
    a("v_or_b32 %s, s%d, %s" % (vr(u2), sT1, vr(u2)))
    for u in range(2):
        a("v_lshl_or_b32 %s, %s, 2, %s" % (vr(u3), vr(u0), vr(u1)))
        if u:
            a("v_or_b32 %s, 2, %s" % (vr(u3), vr(u3)))
        a("v_xor_b32 %s, %s, %s" % (vr(u3), vr(u3), vr(u2)))
        a("v_lshlrev_b32 %s, 4, %s" % (vr(u3), vr(u3)))
        a("v_lshl_add_u32 %s, %s, 2, %s" % (vr(u4), vr(u1), vr(u0)))
        a("v_add_u32 %s, %d, %s" % (vr(u4), 8 * u, vr(u4)))
        a("v_lshl_add_u32 %s, %s, 8, %s" % (vr(u3), vr(u4), vr(u3)))
        a("v_and_b32 %s, 1, v1" % vr(u5))
        a("v_lshl_add_u32 %s, %s, 3, %s" % (vr(vVA + u), vr(u5), vr(u3)))
        a("v_add_u32 %s, 0x10000, %s" % (vr(vVA + 2 + u), vr(vVA + u)))
    a("v_lshlrev_b32 %s, 4, v1" % vr(u0))
    a("v_add_u32 %s, 0x20000, %s" % (vr(vPR), vr(u0)))
    a("s_lshl_b32 s%d, s%d, 13" % (sT1, sW))
    a("v_add_u32 %s, s%d, %s" % (vr(vPW), sT1, vr(vPR)))
    a("v_mov_b32 %s, 0xff800000" % vr(vNINF))
    for k in range(4):
        a("v_mov_b32 %s, 0x3f803f80" % vr(vONE + k))
    a.c("verify the prediction: lengths (scalar) and table rows 2w, 2w+1")
    a("s_waitcnt lgkmcnt(0)")
    a("s_mov_b32 s%d, 0" % sBAD)
    for b in range(8):
        a("s_cmp_lg_u32 s%d, %d" % (sC + b, PRED_CTX[b]))
        a("s_cselect_b32 s%d, 1, s%d" % (sBAD, sBAD))
    a("s_waitcnt vmcnt(%d)" % (3 if OPT["prewarm"] else 0))
    a("v_lshrrev_b32 %s, 5, v1" % vr(u0))
    a("v_lshlrev_b32 %s, 7, %s" % (vr(u0), vr(u0)))
    a("v_lshlrev_b32 %s, 2, v1" % vr(u1))
    a("s_lshl_b32 s%d, s%d, 1" % (sT0, sW))
    a("v_mov_b32 %s, 0" % vr(u3))
    for r in range(2):
        a("v_mad_u32_u24 %s, %s, s%d, %s" % (vr(u2), vr(u0), sT0, vr(u1)))
        for c in range(4):
            a("v_add_u32 %s, %d, %s" % (vr(u4), c, vr(u2)))
            a("v_sad_u32 %s, %s, %s, %s" % (vr(u3), vr(vTS + 4 * r + c), vr(u4), vr(u3)))
        a("s_add_u32 s%d, s%d, 1" % (sT0, sT0))
    a("v_cmp_ne_u32 vcc, 0, %s" % vr(u3))
    a("s_nop 3")
    a("s_cmp_lg_u64 vcc, 0")
    a("s_cselect_b32 s%d, 1, s%d" % (sBAD, sBAD))
    a("s_branch C_body")

    a.lab("C_generic")
    partition()
    a.lab("C_round")
    decode8()
    maskinfo()

    a.lab("C_body")
    a("v_cmp_gt_i32 vcc, 1, %s" % vr(vCTXR))
    a("v_mov_b32 %s, 0x1000" % vr(t0))
    a("v_min_i32 %s, 0x1000, %s" % (vr(t1), vr(vCTXR)))
    a("v_cndmask_b32 %s, %s, %s, vcc" % (vr(t1), vr(t1), vr(t0)))
    a("v_lshrrev_b32 %s, 5, v1" % vr(t2))
    a("v_lshlrev_b32 %s, 2, %s" % (vr(t2), vr(t2)))
    a("v_sub_u32 %s, %s, %s" % (vr(vCTXH), vr(t1), vr(t2)))
    for u in range(8):
        a("v_readlane_b32 s%d, %s, %d" % (sJ16 + u, vr(vJ), u))
        a("v_readlane_b32 s%d, %s, %d" % (sMK + 2 * u, vr(vM32), u))
        a("v_readlane_b32 s%d, %s, %d" % (sMK + 2 * u + 1, vr(vM32), u))
    a("s_nop 1")
    for u in range(8):
        a("v_cndmask_b32 %s, 0, %s, %s" % (vr(vLIM + u), vr(vCTXH), sp(sMK + 2 * u)))
    for u in range(8):
        a("v_subrev_u32 %s, s%d, %s" % (vr(vLIM + u), sJ16 + u, vr(vLIM + u)))
    a("v_mov_b32 %s, %s" % (vr(vMAX), vr(vNINF)))
    a.c("relevance mask of the 8 batches for this chunk, record bases")
    sU0, sU1, sREL, sOB, sMB = sSOFF, sSOFF + 1, sSOFF + 2, sSOFF + 3, sSOFF + 4
    a("s_lshl_b32 s%d, s%d, 2" % (sT0, sCH))
    a("s_mul_i32 s%d, s%d, s%d" % (sU0, sT0, sU))
    a("s_lshl2_add_u32 s%d, s%d, s%d" % (sU1, sU, sU0))
    a("s_lshr_b32 s%d, s%d, s%d" % (sU0, sU0, sSH))
    a("s_lshr_b32 s%d, s%d, s%d" % (sU1, sU1, sSH))
    a("s_mov_b32 s%d, 0" % sREL)
    for b in range(8):
        a("s_cmp_lt_u32 s%d, s%d" % (sU0, sB + b + 1))
        a("s_cselect_b32 s%d, %d, 0" % (sT0, 1 << b))
        a("s_cmp_gt_u32 s%d, s%d" % (sU1, sB + b))
        a("s_cselect_b32 s%d, s%d, 0" % (sT0, sT0))
        a("s_or_b32 s%d, s%d, s%d" % (sREL, sREL, sT0))
    a("s_cmp_lt_u32 s%d, s%d" % (sU0, sS))
    a("s_cselect_b32 s%d, 0xff, s%d" % (sREL, sREL))
    a("s_lshl_b32 s%d, s%d, 6" % (sT0, sG))
    a("s_add_u32 s%d, s%d, s%d" % (sT0, sT0, sCH))
    a("s_lshl_b32 s%d, s%d, 14" % (sOB, sT0))
    a("s_add_u32 s%d, s%d, 0x%x" % (sOB, sOB, WS_O))
    a("s_lshl_b32 s%d, s%d, 11" % (sMB, sT0))
    a("s_add_u32 s%d, s%d, 0x%x" % (sMB, sMB, WS_ML))
    a("s_lshl_b32 s%d, s%d, 6" % (sT0, sW))
    a("s_add_u32 s%d, s%d, s%d" % (sMB, sMB, sT0))

    a.c("S phase")
    for t in range(4):
        a("s_barrier")
        stamp()
        if t == 0:
            a.c("Q fragments from the staged copy (first pass only); zero Q of empty-context batches")
            a("s_cmp_lg_u32 s%d, 0" % sQRD)
            a("s_cbranch_scc1 L_qdone")
            a("s_mov_b32 s%d, 1" % sQRD)
            a("s_sub_u32 s%d, 0x20000, s%d" % (sT0, sWB))
            for s in range(8):
                a("v_add_u32 %s, s%d, %s" % (vr(vVF + s), sT0, vr(vKA + s)))
            for s in range(8):
                a("ds_read_b128 %s, %s" % (vr(vQ + 4 * s, 4), vr(vVF + s)))
            a("v_cmp_lt_i32 vcc, 0, %s" % vr(vCTXR))
            a("s_waitcnt lgkmcnt(0)")
            for k in range(32):
                a("v_cndmask_b32 %s, 0, %s, vcc" % (vr(vQ + k), vr(vQ + k)))
            a.lab("L_qdone")
        for s in range(8):
            a("ds_read_b128 %s, %s offset:%d" % (vr(vKF + 4 * s, 4), vr(vKA + s), t * 8192))
        for s in range(8):
            a("s_waitcnt lgkmcnt(%d)" % (7 - s))
            a("v_mfma_f32_32x32x16_bf16 %s, %s, %s, %s" % (
                vr(vS + 16 * t, 16), vr(vKF + 4 * s, 4), vr(vQ + 4 * s, 4),
                "0" if s == 0 else vr(vS + 16 * t, 16)))
        if t == 1:
            a("s_cmp_lg_u32 s%d, 0" % sW)
            a("s_cbranch_scc1 L_nonld")
            a("global_load_dwordx2 %s, %s, %s sc1" % (vr(vN2, 2), vr(vNOFF), sp(sDBG)))
            a.lab("L_nonld")
        a("s_nop 3")
        for half in range(2):
            u = 2 * t + half
            for r8 in range(8):
                const = 8 * ((r8 >> 2) & 1) + (r8 & 3)
                a("v_cmp_lt_i32 %s, %d, %s" % (sp(sMK + 2 * r8), const, vr(vLIM + u)))
            for r8 in range(8):
                r = vS + 16 * t + 8 * half + r8
                a("v_cndmask_b32 %s, %s, %s, %s" % (vr(r), vr(vNINF), vr(r), sp(sMK + 2 * r8)))
            for r8 in range(0, 8, 2):
                r = vS + 16 * t + 8 * half + r8
                a("v_max3_f32 %s, %s, %s, %s" % (vr(vMAX), vr(vMAX), vr(r), vr(r + 1)))
    a.c("max exchange: every wave writes {max[32], flag[32]} into the P area of every compute wave")
    a("s_cmp_lg_u32 s%d, 0" % sW)
    a("s_cbranch_scc1 L_nonw0")
    a("s_waitcnt vmcnt(0)")
    nonce_wait("C")
    a.lab("L_nonw0")
    a("v_mov_b32 %s, %s" % (vr(t0), vr(vMAX)))
    a("s_nop 1")
    a("v_permlane32_swap_b32 %s, %s" % (vr(vMAX), vr(t0)))
    a("v_mov_b32 %s, s%d" % (vr(t1), sBAD))
    a("v_cmp_gt_u32 vcc, 32, v1")
    a("v_max_f32 %s, %s, %s" % (vr(vMAX), vr(vMAX), vr(t0)))
    a("v_lshlrev_b32 %s, 2, v1" % vr(t2))
    a("v_cndmask_b32 %s, %s, %s, vcc" % (vr(t3), vr(t1), vr(vMAX)))
    a("v_writelane_b32 %s, s%d, 62" % (vr(t3), sNONCE))
    a("v_writelane_b32 %s, s%d, 63" % (vr(t3), sNONCE + 1))
    a("v_writelane_b32 %s, s%d, 2" % (vr(t1), sNONCE))
    a("v_writelane_b32 %s, s%d, 3" % (vr(t1), sNONCE + 1))
    a("s_lshl_b32 s%d, s%d, 8" % (sT0, sW))
    a("s_add_u32 s%d, s%d, 0x20000" % (sT0, sT0))
    a("v_add_u32 %s, s%d, %s" % (vr(t2), sT0, vr(t2)))
    for w in range(4):
        a("ds_write_b32 %s, %s offset:%d" % (vr(t2), vr(t3), w * 8192))
    a("s_add_u32 s%d, s%d, %d" % (sT0, sWB, 3 * 8192))
    a("v_lshlrev_b32 %s, 2, v1" % vr(t2))
    a("v_add_u32 %s, s%d, %s" % (vr(t2), sT0, vr(t2)))
    a("ds_write_b32 %s, %s" % (vr(t2), vr(t1)))
    a("v_and_b32 %s, 31, v1" % vr(t3))
    a("v_lshlrev_b32 %s, 2, %s" % (vr(t3), vr(t3)))
    a("s_lshl_b32 s%d, s%d, 13" % (sT0, sW))
    a("s_add_u32 s%d, s%d, 0x20000" % (sT0, sT0))
    a("v_add_u32 %s, s%d, %s" % (vr(t3), sT0, vr(t3)))
    a("s_waitcnt lgkmcnt(0)")
    a("s_barrier")
    stamp()
    X = vKF
    for w in range(4):
        a("ds_read2_b32 %s, %s offset0:%d offset1:%d" % (vr(X + 2 * w, 2), vr(t3), w * 64, w * 64 + 32))
    a("v_mov_b32 %s, s%d" % (vr(t4), sT0))
    a("ds_read_b64 %s, %s offset:248" % (vr(X + 8, 2), vr(t4)))
    a("s_waitcnt lgkmcnt(0)")
    a("v_readfirstlane_b32 s%d, %s" % (sNONCE, vr(X + 8)))
    a("v_readfirstlane_b32 s%d, %s" % (sNONCE + 1, vr(X + 9)))
    a("v_or3_b32 %s, %s, %s, %s" % (vr(t0), vr(X + 1), vr(X + 3), vr(X + 5)))
    a("v_or_b32 %s, %s, %s" % (vr(t0), vr(t0), vr(X + 7)))
    a("v_max3_f32 %s, %s, %s, %s" % (vr(vMAX), vr(X), vr(X + 2), vr(X + 4)))
    a("v_readfirstlane_b32 s%d, %s" % (sT0, vr(t0)))
    a("v_mov_b32 %s, %s" % (vr(t0), f32hex(-1e30)))
    a("v_max3_f32 %s, %s, %s, %s" % (vr(vMAX), vr(vMAX), vr(X + 6), vr(t0)))
    a("s_nop 1")
    a("s_cmp_lg_u32 s%d, 0" % sT0)
    a("s_cbranch_scc1 C_fallback")
    a("s_mov_b32 s%d, %s" % (sT0, f32hex(SCALE_LOG2)))
    a("v_mul_f32 %s, %s, %s" % (vr(vNMC), f32hex(-SCALE_LOG2), vr(vMAX)))
    a.c("P phase (+ row sums of this wave's P through a ones-MFMA)")
    GA, GB = vTMP + 8, vTMP + 12
    for u in range(8):
        base = vS + 8 * u
        for k in range(8):
            a("v_fma_f32 %s, %s, s%d, %s" % (vr(base + k), vr(base + k), sT0, vr(vNMC)))
        for k in range(8):
            a("v_exp_f32 %s, %s" % (vr(base + k), vr(base + k)))
        pk = vTMP + 4 * (u & 1)
        for k in range(4):
            a("v_cvt_pk_bf16_f32 %s, %s, %s" % (vr(pk + k), vr(base + 2 * k), vr(base + 2 * k + 1)))
        a("ds_write_b128 %s, %s offset:%d" % (vr(vPW), vr(pk, 4), u * 1024))
        a("s_nop 0")
        a("v_mfma_f32_32x32x16_bf16 %s, %s, %s, %s" % (
            vr(vACL, 16), vr(vONE, 4), vr(pk, 4), "0" if u == 0 else vr(vACL, 16)))
    a("s_waitcnt vmcnt(0)")
    a("v_mov_b32 %s, s%d" % (vr(GA + 2), sNONCE))
    a("v_mov_b32 %s, s%d" % (vr(GA + 3), sNONCE + 1))
    a("v_bfe_u32 %s, v1, 2, 3" % vr(t4))
    if OPT.get("skippub"):
        a("s_mov_b32 s%d, 0" % sREL)
    a("v_lshrrev_b32_e64 %s, %s, s%d" % (vr(t5), vr(t4), sREL))
    a("v_and_b32 %s, 1, %s" % (vr(t5), vr(t5)))
    a("v_cmp_eq_u32 vcc, 1, %s" % vr(t5))
    a("v_lshlrev_b32 %s, 8, %s" % (vr(t4), vr(t4)))
    a("v_and_b32 %s, 3, v1" % vr(t5))
    a("v_lshl_add_u32 %s, %s, 4, %s" % (vr(t4), vr(t5), vr(t4)))
    a("v_mov_b32 %s, %s" % (vr(GA), vr(vMAX)))
    a("v_mov_b32 %s, %s" % (vr(GA + 1), vr(vACL)))
    a("s_and_b32 exec_lo, vcc_lo, -1")
    a("s_mov_b32 exec_hi, 0")
    a("s_cbranch_execz L_noml2")
    a("buffer_store_dwordx4 %s, %s, %s, s%d offen sc1" % (vr(GA, 4), vr(t4), sq(SRDW), sMB))
    a.lab("L_noml2")
    a("s_mov_b64 exec, -1")
    a("s_waitcnt lgkmcnt(0)")
    a("s_barrier")
    stamp()
    GC = vTMP
    sSEL = sJ16
    a("s_mov_b32 s%d, 0x07060503" % sSEL)
    a("s_mov_b32 s%d, 0x07060502" % (sSEL + 1))
    a("s_mov_b32 s%d, 0x07060501" % (sSEL + 2))
    a("v_mov_b32 %s, s%d" % (vr(GB + 3), sNONCE))
    a("v_mov_b32 %s, s%d" % (vr(GC + 3), sNONCE))
    a.c("PV phase")
    PF = lambda k: vS + 4 * (k & 15)
    VF = lambda k: vKF + 4 * (k & 15)

    def rd_p(t, k8):
        w, s_ = k8 >> 1, k8 & 1
        a("ds_read_b128 %s, %s offset:%d" % (vr(PF(8 * t + k8), 4), vr(vPR), (w * 8 + 2 * t + s_) * 1024))

    def rd_v(t, k8):
        w, s_ = k8 >> 1, k8 & 1
        for u in range(2):
            a("ds_read_b64_tr_b16 %s, %s offset:%d" % (
                vr(VF(8 * t + k8) + 2 * u, 2), vr(vVA + 2 * (w >> 1) + u),
                (w & 1) * 32768 + t * 8192 + s_ * 4096))

    def mf_l(t, k8):
        a("v_mfma_f32_32x32x16_bf16 %s, %s, %s, %s" % (
            vr(vACL, 16), vr(vONE, 4), vr(PF(8 * t + k8), 4),
            "0" if (t == 0 and k8 == 0) else vr(vACL, 16)))

    def mf_o(t, k8):
        a("v_mfma_f32_32x32x16_bf16 %s, %s, %s, %s" % (
            vr(vACO, 16), vr(PF(8 * t + k8), 4), vr(VF(8 * t + k8), 4),
            "0" if (t == 0 and k8 == 0) else vr(vACO, 16)))

    seq = [(t, k) for t in range(2) for k in range(8)]
    for i in range(4):
        rd_p(*seq[i])
        rd_v(*seq[i])
    for i, (t, k) in enumerate(seq):
        ahead = min(3, len(seq) - 1 - i)
        a("s_waitcnt lgkmcnt(%d)" % (3 * ahead))
        mf_o(t, k)
        if i + 4 < len(seq):
            rd_p(*seq[i + 4])
            rd_v(*seq[i + 4])
    for t in (2, 3):
        for k in range(8):
            rd_p(t, k)
    a("s_mul_i32 s%d, s%d, 896" % (sT3, sNR))
    for t in (2, 3):
        if t == 2:
            a("s_waitcnt lgkmcnt(0)")
        a("s_barrier")
        stamp()
        if t == 2:
            for k in range(8):
                rd_v(t, k)
            for k in range(8):
                a("s_waitcnt lgkmcnt(%d)" % (14 - 2 * k))
                mf_o(t, k)
        else:
            for k in (0, 2, 4, 6):
                rd_v(t, k)
            for j, k in enumerate((0, 2, 4, 6)):
                a("s_waitcnt lgkmcnt(%d)" % (6 - 2 * j))
                mf_o(t, k)
            a("s_cmp_le_u32 s%d, s%d" % (sU, sT3))
            a("s_cbranch_scc1 L_pv3done")
            for k in (1, 3, 5, 7):
                rd_v(t, k)
            for j, k in enumerate((1, 3, 5, 7)):
                a("s_waitcnt lgkmcnt(%d)" % (6 - 2 * j))
                mf_o(t, k)
            a.lab("L_pv3done")
    a("s_nop 8")
    a.c("publish O: {head0|x, head1|y, head2|z, tag}, head 3 = bytes x,y,z")
    for gq in range(4):
        q = GB if (gq & 1) == 0 else GC
        a("s_bfe_i32 exec_lo, s%d, 0x%x" % (sREL, 0x10000 | (2 * gq)))
        a("s_bfe_i32 exec_hi, s%d, 0x%x" % (sREL, 0x10000 | (2 * gq + 1)))
        a("s_add_u32 s%d, s%d, %d" % (sT2, sOB, gq * 4096))
        a("s_cbranch_execz L_skipo%d" % gq)
        for k in range(3):
            a("v_perm_b32 %s, %s, %s, s%d" % (vr(q + k), vr(vACO + 4 * gq + k), vr(vACO + 4 * gq + 3), sSEL + k))
        a("buffer_store_dwordx4 %s, %s, %s, s%d offen sc1" % (vr(q, 4), vr(vOOFF), sq(SRDW), sT2))
        a.lab("L_skipo%d" % gq)
    a("s_mov_b64 exec, -1")
    stamp(True)
    a("s_add_u32 s%d, s%d, 1" % (sR, sR))
    a("s_cmp_ge_u32 s%d, s%d" % (sR, sNR))
    if OPT["stamps"]:
        a("s_cbranch_scc1 C_stampout")
    else:
        a("s_cbranch_scc1 L_end")
    a("s_waitcnt vmcnt(0)")
    a("s_barrier")
    a("s_branch C_round")
    a.lab("C_fallback")
    a("s_waitcnt vmcnt(0) lgkmcnt(0)")
    a("s_barrier")
    a("s_branch C_generic")
    if OPT["stamps"]:
        a.lab("C_stampout")
        stampout(5)

    compute_lines = a.l
    a.l = []
    a.lab("LD_entry")
    a.nstamp = st0
    if OPT.get("prio"):
        a("s_setprio 3")
    a("v_lshrrev_b32 %s, 4, v1" % vr(t0))
    a("v_and_b32 %s, 15, v1" % vr(t1))
    a("s_lshl_b32 s%d, s%d, 8" % (sT0, sG))
    for p in range(4):
        a("v_lshl_or_b32 %s, %s, 2, %d" % (vr(t2), vr(t0), p))
        a("v_xor_b32 %s, %s, %s" % (vr(t2), vr(t2), vr(t1)))
        a("v_lshlrev_b32 %s, 4, %s" % (vr(t2), vr(t2)))
        a("v_lshl_add_u32 %s, %s, 11, %s" % (vr(t2), vr(t0), vr(t2)))
        a("v_add_u32 %s, %d, %s" % (vr(t2), p * 8192 - 1024 * p, vr(t2)))
        a("v_add_u32 %s, s%d, %s" % (vr(vVOFF + p), sT0, vr(t2)))
    decode32()
    a("v_lshrrev_b32 %s, 8, %s" % (vr(t0), vr(vTT)))
    a("v_and_b32 %s, 0xff, %s" % (vr(vID), vr(vTT)))
    a("v_lshl_add_u32 %s, %s, 7, %s" % (vr(vID), vr(t0), vr(vID)))
    ids_to_soff()
    vQV = 32
    a("v_lshrrev_b32 %s, 4, v1" % vr(t0))
    a("v_and_b32 %s, 15, v1" % vr(t1))
    for p in range(4):
        a("v_lshl_or_b32 %s, %s, 2, %d" % (vr(t2), vr(t0), p))
        a("v_xor_b32 %s, %s, %s" % (vr(t2), vr(t2), vr(t1)))
        a("v_lshlrev_b32 %s, 4, %s" % (vr(t2), vr(t2)))
        a("v_lshl_add_u32 %s, %s, 8, %s" % (vr(vQV + p), vr(t0), vr(t2)))
    a("s_waitcnt lgkmcnt(0)")
    stamp()
    srd(SRDW, sQ, 65536)
    a("s_lshl_b32 s%d, s%d, 10" % (sT0, sG))
    for b in range(8):
        a("s_mov_b32 m0, %d" % (0x20000 + b * 1024))
        a("s_add_u32 s%d, s%d, %d" % (sT1, sT0, b * 8192))
        a("buffer_load_dwordx4 %s, %s, s%d offen lds" % (vr(vQV + (b & 3)), sq(SRDW), sT1))
    srd(SRDK, sK, KV_BYTES)
    srd(SRDV, sV, KV_BYTES)
    srd(SRDW, sWS, WS_SIZE)
    main_lines = a.l
    a.l = []
    a.lab("LD_generic")
    partition()
    a.lab("LD_round")
    decode32()
    a("v_lshlrev_b32 %s, 2, %s" % (vr(t0), vr(vTT)))
    a("s_nop 0")
    a("v_cndmask_b32 %s, 0, %s, vcc" % (vr(t0), vr(t0)))
    a("global_load_dword %s, %s, %s" % (vr(vID), vr(t0), sp(sBT)))
    a("s_waitcnt vmcnt(0)")
    ids_to_soff()
    a("s_nop 1")
    a("s_branch LD_issue")
    ldgen_lines = a.l
    a.l = main_lines
    a.lab("LD_issue")

    def rnd(r, waves=(0, 1, 2, 3)):
        srdx = SRDK if r < 4 else SRDV
        rr = r & 3
        base = sSOFF if (r & 1) == 0 else sJ16
        for wv in waves:
            for s in range(2):
                a("v_readlane_b32 s%d, %s, %d" % (base + 2 * wv + s, vr(vID), 8 * wv + 2 * rr + s))
        if len(waves) < 4:
            a("s_nop 1")
        for wv in waves:
            for s in range(2):
                a("s_mov_b32 m0, %d" % (wv * 32768 + (2 * rr + s) * 4096))
                a("s_nop 0")
                for p in range(4):
                    a("buffer_load_dwordx4 %s, %s, s%d offen offset:%d%s lds" % (
                        vr(vVOFF + p), sq(srdx), base + 2 * wv + s, 1024 * p, NT))

    rnd(0)
    rnd(1)
    rnd(2)
    a("s_waitcnt vmcnt(62)")
    stamp()
    a("s_barrier")
    rnd(3)
    a("s_waitcnt vmcnt(62)")
    stamp()
    a("s_barrier")
    rnd(4)
    a("s_waitcnt vmcnt(62)")
    stamp()
    a("s_barrier")
    rnd(5)
    a("s_waitcnt vmcnt(62)")
    stamp()
    a("s_barrier")
    rnd(6, (0, 1))
    stamp()
    a("s_barrier")
    a("v_mov_b32 %s, %d" % (vr(t0), 3 * 8192))
    a("v_mov_b32 %s, %d" % (vr(t1), 3 * 8192 + 65536))
    a("ds_read_b32 %s, %s" % (vr(t2), vr(t0)))
    a("ds_read_b32 %s, %s offset:32768" % (vr(t3), vr(t0)))
    a("ds_read_b32 %s, %s" % (vr(t4), vr(t1)))
    a("ds_read_b32 %s, %s offset:32768" % (vr(t5), vr(t1)))
    a("ds_read_b64 %s, %s offset:8" % (vr(vNON, 2), vr(t0)))
    a("s_waitcnt lgkmcnt(0)")
    a("v_readfirstlane_b32 s%d, %s" % (sNONCE, vr(vNON)))
    a("v_readfirstlane_b32 s%d, %s" % (sNONCE + 1, vr(vNON + 1)))
    a("v_or3_b32 %s, %s, %s, %s" % (vr(t2), vr(t2), vr(t3), vr(t4)))
    a("v_or_b32 %s, %s, %s" % (vr(t2), vr(t2), vr(t5)))
    a("s_nop 0")
    a("v_readfirstlane_b32 s%d, %s" % (sT0, vr(t2)))
    a("s_nop 1")
    a("s_cmp_lg_u32 s%d, 0" % sT0)
    a("s_cbranch_scc1 LD_fallback")
    rnd(6, (2, 3))
    rnd(7)
    a("s_waitcnt vmcnt(62)")
    stamp()
    a("s_barrier")
    sBt, sQD, sN1, sA2, sN, sKK, sB0, sB1, sGB, sSPIN, sCNT, sPEND = 64, 65, 66, 67, 68, 69, 70, 71, 72, 73, 74, 75
    sM = 76
    sHALF = 78
    sREC = 80
    sOUTB = 92
    sS1, sS2 = 93, 94
    SRDO = 20
    NP = NSLOT // 2
    vCST, vMO = 6, 8
    vMR, vLA, vOA, vNM, vSC, vRL = 10, 14, 18, 22, 26, 30
    vA0, vA1 = 34, 35
    vLW, vLR, vSL, vOB = 36, 37, 38, 39
    vAD = 40
    vY = 48
    vML = 240
    vD = 64
    vW = 96
    a("s_lshr_b32 s%d, s%d, 2" % (sBt, sI))
    a("s_and_b32 s%d, s%d, 3" % (sQD, sI))
    a("s_mov_b32 s%d, s%d" % (sB0, sB))
    a("s_mov_b32 s%d, s%d" % (sB1, sB + 1))
    for b in range(1, 8):
        a("s_cmp_eq_u32 s%d, %d" % (sBt, b))
        a("s_cselect_b32 s%d, s%d, s%d" % (sB0, sB + b, sB0))
        a("s_cselect_b32 s%d, s%d, s%d" % (sB1, sB + b + 1, sB1))
    a("v_lshlrev_b32 %s, 2, v1" % vr(vCST))
    a("v_mul_lo_u32 %s, %s, s%d" % (vr(vCST), vr(vCST), sU))
    a("v_lshrrev_b32 %s, s%d, %s" % (vr(vCST), sSH, vr(vCST)))
    a("s_sub_u32 s%d, s%d, 2" % (sT0, sSH))
    a("s_lshl_b32 s%d, 1, s%d" % (sT0, sT0))
    a("v_cmp_gt_u32 %s, s%d, v1" % (sp(sM), sT0))
    a("v_cmp_gt_u32 vcc, s%d, %s" % (sS, vr(vCST)))
    a("s_and_b64 vcc, vcc, %s" % sp(sM))
    a("s_bcnt1_i32_b64 s%d, vcc" % sN1)
    a("v_cmp_ge_u32 vcc, s%d, %s" % (sB0, vr(vCST)))
    a("s_and_b64 vcc, vcc, %s" % sp(sM))
    a("s_bcnt1_i32_b64 s%d, vcc" % sA2)
    a("s_sub_u32 s%d, s%d, 1" % (sA2, sA2))
    a("s_max_u32 s%d, s%d, s%d" % (sA2, sA2, sN1))
    a("v_cmp_gt_u32 vcc, s%d, %s" % (sB1, vr(vCST)))
    a("s_and_b64 vcc, vcc, %s" % sp(sM))
    a("s_bcnt1_i32_b64 s%d, vcc" % sT1)
    a("s_sub_i32 s%d, s%d, s%d" % (sT1, sT1, sA2))
    a("s_max_i32 s%d, s%d, 0" % (sT1, sT1))
    a("s_cmp_gt_u32 s%d, s%d" % (sB1, sB0))
    a("s_cselect_b32 s%d, s%d, 0" % (sT1, sT1))
    a("s_add_u32 s%d, s%d, s%d" % (sN, sN1, sT1))
    a("s_sub_u32 s%d, s%d, s%d" % (sA2, sA2, sN1))
    a("s_lshl_b32 s%d, s%d, 6" % (sGB, sG))
    a("v_and_b32 %s, 31, v1" % vr(vA0))
    a("v_lshrrev_b32 %s, 5, v1" % vr(vA1))
    a("s_mov_b32 s%d, 0" % sHALF)
    a("s_mov_b32 s%d, -1" % (sHALF + 1))
    a("v_lshlrev_b32 %s, 4, %s" % (vr(vOB), vr(vA0)))
    a("s_lshl_b32 s%d, s%d, 9" % (sT0, sQD))
    a("s_lshl_b32 s%d, s%d, 11" % (sT1, sBt))
    a("s_add_u32 s%d, s%d, s%d" % (sT0, sT0, sT1))
    a("s_add_u32 s%d, s%d, 0x%x" % (sT0, sT0, WS_O))
    a("v_add_u32 %s, s%d, %s" % (vr(vOB), sT0, vr(vOB)))
    a("v_lshlrev_b32 %s, 2, v1" % vr(vLW))
    a("v_lshlrev_b32 %s, 4, %s" % (vr(vLR), vr(vA1)))
    a("v_lshrrev_b32 %s, 2, v1" % vr(vSL))
    a("v_mov_b32 %s, %s" % (vr(vMR), f32hex(-1e30)))
    a("v_mov_b32 %s, 0" % vr(vLA))
    for k in range(4):
        a("v_mov_b32 %s, 0" % vr(vOA + k))
    a("s_mov_b32 s%d, 0" % sKK)
    a("s_mov_b32 s%d, 0x0c0c0004" % sS1)
    a("s_mov_b32 s%d, 0x04000c0c" % sS1)
    a("s_mov_b32 s%d, 0x0706000c" % sS2)
    a("s_lshl_b32 s%d, s%d, 13" % (sOUTB, sBt))
    a("s_lshl_b32 s%d, s%d, 10" % (sT1, sG))
    a("s_add_u32 s%d, s%d, s%d" % (sOUTB, sOUTB, sT1))
    a("s_lshl_b32 s%d, s%d, 6" % (sT1, sQD))
    a("s_add_u32 s%d, s%d, s%d" % (sOUTB, sOUTB, sT1))

    def recs():
        a("s_sub_u32 s%d, s%d, s%d" % (sCNT, sN, sKK))
        for p in range(NSLOT):
            a("s_add_u32 s%d, s%d, %d" % (sT0, sKK, p))
            a("s_cmp_gt_u32 s%d, %d" % (sCNT, p))
            a("s_cselect_b32 s%d, s%d, s%d" % (sT0, sT0, sKK))
            a("s_add_u32 s%d, s%d, s%d" % (sT1, sT0, sA2))
            a("s_cmp_lt_u32 s%d, s%d" % (sT0, sN1))
            a("s_cselect_b32 s%d, s%d, s%d" % (sT0, sT0, sT1))
            a("s_add_u32 s%d, s%d, s%d" % (sT0, sT0, sGB))
            a("s_lshl_b32 s%d, s%d, 14" % (sREC + p, sT0))
        for j in range(NP):
            a("v_mov_b32 %s, s%d" % (vr(vY), sREC + 2 * j))
            a("v_mov_b32 %s, s%d" % (vr(vY + 1), sREC + 2 * j + 1))
            a("v_cndmask_b32 %s, %s, %s, %s" % (vr(vY), vr(vY), vr(vY + 1), sp(sHALF)))
            a("v_add_u32 %s, %s, %s" % (vr(vAD + j), vr(vY), vr(vOB)))
        a("v_add_u32 %s, s%d, %s" % (vr(vY), sKK, vr(vSL)))
        a("v_mov_b32 %s, s%d" % (vr(vY + 1), sKK))
        a("v_cmp_gt_u32 vcc, s%d, %s" % (sCNT, vr(vSL)))
        a("v_cmp_gt_u32 %s, %d, %s" % (sp(sM), NSLOT, vr(vSL)))
        a("s_and_b64 vcc, vcc, %s" % sp(sM))
        a("s_nop 1")
        a("v_cndmask_b32 %s, %s, %s, vcc" % (vr(vY), vr(vY + 1), vr(vY)))
        a("v_add_u32 %s, s%d, %s" % (vr(vY + 1), sA2, vr(vY)))
        a("v_cmp_gt_u32 vcc, s%d, %s" % (sN1, vr(vY)))
        a("s_nop 1")
        a("v_cndmask_b32 %s, %s, %s, vcc" % (vr(vY), vr(vY + 1), vr(vY)))
        a("v_add_u32 %s, s%d, %s" % (vr(vY), sGB, vr(vY)))
        a("v_lshlrev_b32 %s, 11, %s" % (vr(vY), vr(vY)))
        a("v_and_b32 %s, 3, v1" % vr(vY + 1))
        a("v_lshl_add_u32 %s, %s, 4, %s" % (vr(vY), vr(vY + 1), vr(vY)))
        a("s_lshl_b32 s%d, s%d, 8" % (sT0, sBt))
        a("s_add_u32 s%d, s%d, 0x%x" % (sT0, sT0, WS_ML))
        a("v_add_u32 %s, s%d, %s" % (vr(vMO), sT0, vr(vY)))
    recs()
    a("v_lshlrev_b32 %s, 9, %s" % (vr(vA1), vr(vA1)))
    a("v_lshl_add_u32 %s, %s, 1, %s" % (vr(vA1), vr(vA0), vr(vA1)))
    a("s_waitcnt vmcnt(32)")
    stamp()
    a("s_barrier")

    def ml_loads():
        for w in range(4):
            a("buffer_load_dwordx4 %s, %s, %s, 0 offen offset:%d sc1" % (vr(vML + 4 * w, 4), vr(vMO), sq(SRDW), 64 * w))
    ml_loads()
    a("s_waitcnt vmcnt(4)")
    stamp(True)
    a("s_barrier")
    a("s_waitcnt vmcnt(0)")
    a("s_add_u32 s%d, s%d, 1" % (sR, sR))
    a("s_cmp_ge_u32 s%d, s%d" % (sR, sNR))
    a("s_cbranch_scc1 LD_combine")
    a("s_barrier")
    a("s_branch LD_round")
    a.lab("LD_fallback")
    a("s_waitcnt vmcnt(0) lgkmcnt(0)")
    a("s_barrier")
    a("s_branch LD_generic")

    a.lab("LD_combine")
    a("s_mov_b32 s%d, %s" % (sT3, f32hex(SCALE_LOG2)))
    a("s_mov_b32 s%d, 0" % sSPIN)
    a("s_branch L_chkml")
    a.lab("L_cbatch")
    a("s_mov_b32 s%d, 0" % sSPIN)
    a.lab("L_pollml")
    ml_loads()
    a("s_waitcnt vmcnt(0)")
    a.lab("L_chkml")
    a("v_cmp_eq_u64 vcc, %s, %s" % (sp(sNONCE), vr(vML + 2, 2)))
    for w in range(1, 4):
        a("v_cmp_eq_u64 %s, %s, %s" % (sp(sM), sp(sNONCE), vr(vML + 4 * w + 2, 2)))
        a("s_and_b64 vcc, vcc, %s" % sp(sM))
    a("s_or_b32 vcc_hi, vcc_hi, 0x%x" % (0xffffffff & ~((1 << (4 * NSLOT - 32)) - 1)))
    a("s_cmp_eq_u64 vcc, -1")
    a("s_cbranch_scc1 L_mlok")
    a("s_add_u32 s%d, s%d, 1" % (sSPIN, sSPIN))
    a("s_cmp_gt_u32 s%d, 0x40000" % sSPIN)
    a("s_cbranch_scc1 L_end")
    a("s_branch L_pollml")
    a.lab("L_mlok")
    vMl, vLl, vMx, vTs, vWt = vY, vY + 1, vY + 2, vY + 3, vY + 4
    vZ = vY + 5
    a("v_cmp_gt_u32 vcc, s%d, %s" % (sCNT, vr(vSL)))
    a("v_cmp_gt_u32 %s, %d, %s" % (sp(sM), NSLOT, vr(vSL)))
    a("v_add_f32 %s, %s, %s" % (vr(vML + 1), vr(vML + 1), vr(vML + 5)))
    a("v_add_f32 %s, %s, %s" % (vr(vML + 9), vr(vML + 9), vr(vML + 13)))
    a("s_and_b64 vcc, vcc, %s" % sp(sM))
    a("v_mov_b32 %s, %s" % (vr(vZ), f32hex(-1e30)))
    a("v_add_f32 %s, %s, %s" % (vr(vML + 1), vr(vML + 1), vr(vML + 9)))
    a("v_cndmask_b32 %s, %s, %s, vcc" % (vr(vMl), vr(vZ), vr(vML)))
    a("v_cndmask_b32 %s, 0, %s, vcc" % (vr(vLl), vr(vML + 1)))

    def allreduce(op, x):
        a("s_nop 1")
        a("%s_dpp %s, %s, %s row_ror:4 row_mask:0xf bank_mask:0xf" % (op, vr(x), vr(x), vr(x)))
        a("s_nop 1")
        a("%s_dpp %s, %s, %s row_ror:8 row_mask:0xf bank_mask:0xf" % (op, vr(x), vr(x), vr(x)))
        a("v_mov_b32 %s, %s" % (vr(vZ), vr(x)))
        a("s_nop 1")
        a("v_permlane16_swap_b32 %s, %s" % (vr(x), vr(vZ)))
        a("s_nop 1")
        a("%s %s, %s, %s" % (op, vr(x), vr(x), vr(vZ)))
        a("v_mov_b32 %s, %s" % (vr(vZ), vr(x)))
        a("s_nop 1")
        a("v_permlane32_swap_b32 %s, %s" % (vr(x), vr(vZ)))
        a("s_nop 1")
        a("%s %s, %s, %s" % (op, vr(x), vr(x), vr(vZ)))

    a("v_max_f32 %s, %s, %s" % (vr(vMx), vr(vMl), vr(vMR)))
    allreduce("v_max_f32", vMx)
    a("v_mul_f32 %s, %s, %s" % (vr(vZ), f32hex(-SCALE_LOG2), vr(vMx)))
    a("v_fma_f32 %s, %s, s%d, %s" % (vr(vWt), vr(vMl), sT3, vr(vZ)))
    a("v_fma_f32 %s, %s, s%d, %s" % (vr(vSC), vr(vMR), sT3, vr(vZ)))
    a("v_exp_f32 %s, %s" % (vr(vWt), vr(vWt)))
    a("v_exp_f32 %s, %s" % (vr(vSC), vr(vSC)))
    a("v_mov_b32 %s, %s" % (vr(vMR), vr(vMx)))
    a("v_mul_f32 %s, %s, %s" % (vr(vTs), vr(vWt), vr(vLl)))
    allreduce("v_add_f32", vTs)
    a("v_fma_f32 %s, %s, %s, %s" % (vr(vLA), vr(vLA), vr(vSC), vr(vTs)))
    a("v_cmp_eq_u32 vcc, 12, %s" % vr(vSL))
    a("v_rcp_f32 %s, %s" % (vr(vTs), vr(vLA)))
    a("v_cmp_eq_u32 %s, 13, %s" % (sp(sM), vr(vSL)))
    a("s_nop 0")
    a("v_cndmask_b32 %s, %s, %s, vcc" % (vr(vWt), vr(vWt), vr(vSC)))
    a("v_cndmask_b32 %s, %s, %s, %s" % (vr(vWt), vr(vWt), vr(vTs), sp(sM)))
    a("ds_write_b32 %s, %s" % (vr(vLW), vr(vWt)))
    stamp()
    for j in range(NP):
        a("ds_read_b128 %s, %s offset:%d" % (vr(vW + 4 * j, 4), vr(vLR), j * 32))
    a("ds_read_b128 %s, %s offset:192" % (vr(vNM, 4), vr(vZERO)))
    a("ds_read_b128 %s, %s offset:208" % (vr(vRL, 4), vr(vZERO)))
    Mreg = lambda j, h: vW + 4 * j + h
    a("s_mov_b32 s%d, s%d" % (SRDO, sOUT))
    a("s_and_b32 s%d, s%d, 0xffff" % (SRDO + 1, sOUT + 1))
    a("s_mov_b32 s%d, 0x10000" % (SRDO + 2))
    a("s_mov_b32 s%d, 0x20000" % (SRDO + 3))
    a("s_mov_b32 s%d, 0" % sSPIN)
    a("s_add_u32 s%d, s%d, 1" % (sT0, sCNT))
    a("s_lshr_b32 s%d, s%d, 1" % (sT0, sT0))
    a("s_min_u32 s%d, s%d, %d" % (sT0, sT0, NP))
    a("s_lshl_b32 s%d, 1, s%d" % (sT0, sT0))
    a("s_sub_u32 s%d, s%d, 1" % (sPEND, sT0))
    a("s_mov_b32 s%d, s%d" % (sB0, sPEND))
    for _ in range(OPT.get("odelay", 0)):
        a("s_sleep 8")
    a.lab("L_pollo")
    for j in range(NP):
        a("s_bitcmp1_b32 s%d, %d" % (sPEND, j))
        a("s_cbranch_scc0 L_noload%d" % j)
        a("buffer_load_dwordx4 %s, %s, %s, 0 offen sc1" % (vr(vD + 4 * j, 4), vr(vAD + j), sq(SRDW)))
        a.lab("L_noload%d" % j)
    a("s_waitcnt vmcnt(0)")
    for j in range(NP):
        a("v_cmp_eq_u32 vcc, s%d, %s" % (sNONCE, vr(vD + 4 * j + 3)))
        a("s_cmp_eq_u64 vcc, -1")
        a("s_cselect_b32 s%d, 0x%x, -1" % (sT0, 0xffffffff & ~(1 << j)))
        a("s_and_b32 s%d, s%d, s%d" % (sPEND, sPEND, sT0))
    a("s_cmp_eq_u32 s%d, 0" % sPEND)
    a("s_cbranch_scc1 L_ook")
    a("s_add_u32 s%d, s%d, 1" % (sSPIN, sSPIN))
    a("s_cmp_gt_u32 s%d, 0x40000" % sSPIN)
    a("s_cbranch_scc1 L_end")
    a("s_branch L_pollo")
    a.lab("L_ook")
    stamp()
    a("s_waitcnt lgkmcnt(0)")
    for h in range(4):
        a("v_mul_f32 %s, %s, %s" % (vr(vOA + h), vr(vOA + h), vr(vNM + h)))
    for j in range(NP):
        d = vD + 4 * j
        if j >= 1:
            a("s_bitcmp1_b32 s%d, %d" % (sB0, j))
            a("s_cbranch_scc0 L_accdone")
        a("v_perm_b32 %s, %s, %s, s%d" % (vr(d + 3), vr(d), vr(d + 1), sS1))
        a("v_fma_f32 %s, %s, %s, %s" % (vr(vOA), vr(Mreg(j, 0)), vr(d), vr(vOA)))
        a("v_perm_b32 %s, %s, %s, s%d" % (vr(d + 3), vr(d + 3), vr(d + 2), sS2))
        a("v_fma_f32 %s, %s, %s, %s" % (vr(vOA + 1), vr(Mreg(j, 1)), vr(d + 1), vr(vOA + 1)))
        a("v_fma_f32 %s, %s, %s, %s" % (vr(vOA + 2), vr(Mreg(j, 2)), vr(d + 2), vr(vOA + 2)))
        a("v_fma_f32 %s, %s, %s, %s" % (vr(vOA + 3), vr(Mreg(j, 3)), vr(d + 3), vr(vOA + 3)))
    a.lab("L_accdone")
    a("s_add_u32 s%d, s%d, %d" % (sKK, sKK, NSLOT))
    a("s_cmp_lt_u32 s%d, s%d" % (sKK, sN))
    a("s_cbranch_scc0 L_final")
    recs()
    a("s_branch L_cbatch")
    a.lab("L_final")
    for h in range(4):
        a("v_mov_b32 %s, %s" % (vr(vY + h), vr(vOA + h)))
    a("s_nop 1")
    for h in range(4):
        a("v_permlane32_swap_b32 %s, %s" % (vr(vOA + h), vr(vY + h)))
    a("s_nop 1")
    for h in range(4):
        a("v_add_f32 %s, %s, %s" % (vr(vOA + h), vr(vOA + h), vr(vY + h)))
    for h in range(4):
        a("v_mul_f32 %s, %s, %s" % (vr(vOA + h), vr(vOA + h), vr(vRL + h)))
    a("v_cndmask_b32 %s, %s, %s, %s" % (vr(vY), vr(vOA), vr(vOA + 2), sp(sHALF)))
    a("v_cndmask_b32 %s, %s, %s, %s" % (vr(vY + 1), vr(vOA + 1), vr(vOA + 3), sp(sHALF)))
    a("v_cvt_pk_bf16_f32 %s, %s, %s" % (vr(vY), vr(vY), vr(vY + 1)))
    a("buffer_store_short %s, %s, %s, s%d offen" % (vr(vY), vr(vA1), sq(SRDO), sOUTB))
    a("buffer_store_short_d16_hi %s, %s, %s, s%d offen offset:256" % (vr(vY), vr(vA1), sq(SRDO), sOUTB))
    if OPT["stamps"]:
        a("s_waitcnt vmcnt(0)")
        stamp(True)
        stampout(5)
    a.lab("L_end")
    a("s_endpgm")
    a.l = entry_lines + a.l + ldgen_lines + compute_lines


def build():
    a = A()
    kernel(a)
    s = HEADER
    s += "; @launch grid=(256,1,1) block=(320,1,1) lds=163840\n"
    s += '.amdgcn_target "amdgcn-amd-amdhsa--gfx950"\n.text\n'
    k = NAME + "_kernel"
    s += ".globl %s\n.p2align 8\n.type %s,@function\n" % (k, k) + a.text()
    s += """.section .rodata,"a"
.p2align 6
.amdhsa_kernel %s
  .amdhsa_next_free_vgpr 256
  .amdhsa_next_free_sgpr 102
  .amdhsa_accum_offset 256
  .amdhsa_group_segment_fixed_size 0
  .amdhsa_kernarg_size 64
  .amdhsa_user_sgpr_count 2
  .amdhsa_user_sgpr_kernarg_segment_ptr 1
  .amdhsa_system_sgpr_workgroup_id_x 1
.end_amdhsa_kernel
""" % k
    return s


if __name__ == "__main__":
    args = sys.argv[1:]
    for x in list(args):
        if x.startswith("--"):
            k = x[2:]
            if k.startswith("odelay="):
                OPT["odelay"] = int(k[7:])
            elif k == "light":
                OPT["light"] = True
                OPT["stamps"] = True
            elif k.startswith("perm="):
                OPT["perm"] = [int(c) for c in k[5:]]
            elif k.startswith("no"):
                OPT[k[2:]] = False
            else:
                OPT[k] = True
            args.remove(x)
    open(args[0] if args else "cdna_kernels/%s.s" % NAME, "w").write(build())
```

```python
import struct
import sys

NAME = "standalone__paged_block_table_kv_radixattention__sampling"

HEADER = """; Kernarg layout for this problem (64 bytes, ptrs only, base s[0:1]):
"""

DOC = """;
"""

NPHYS = 1152
KV_BYTES = NPHYS * 32768
WS_STAMP = 512 << 10
WS_O = 1 << 20
WS_ML = 17 << 20
WS_SIZE = 18 << 20
SCALE_LOG2 = 0.08838834764831845 * 1.4426950408889634
PRED_CTX = [4096 - (i * 2654435761) % 1024 for i in range(1, 9)]
PRED_S = 128
NSLOT = 12

OPT = dict(stamps=False, nt=True, prewarm=True)


def f32hex(x):
    return "0x%08x" % struct.unpack("<I", struct.pack("<f", x))[0]


class A:
    def __init__(self):
        self.l = []
        self.nstamp = 0

    def __call__(self, s):
        self.l.append("    " + s)

    def lab(self, s):
        self.l.append(s + ":")

    def c(self, s):
        self.l.append("    ; " + s)

    def text(self):
        return "\n".join(self.l) + "\n"


def vr(a, n=1):
    return "v%d" % a if n == 1 else "v[%d:%d]" % (a, a + n - 1)


def sp(a):
    return "s[%d:%d]" % (a, a + 1)


def sq(a):
    return "s[%d:%d]" % (a, a + 3)


def kernel(a):
    sMODE = 3
    sQ, sK, sV, sBT, sCTX, sOUT, sDBG, sWS = 4, 6, 8, 10, 12, 14, 16, 18
    sNONCE = 6
    sBAD = 8
    sDRY = 3
    sQRD = 9
    SRDK, SRDV, SRDW = 20, 24, 28
    sC = 32
    sB = 40
    sD = 49
    sSTP = 0
    sG, sI, sW, sS, sSH, sNR, sR = 57, 58, 59, 60, 61, 62, 63
    sSOFF = 64
    sJ16 = 72
    sMK = 80
    sT0, sT1, sT2, sT3 = 96, 97, 98, 99
    sWB, sCH = 100, 101
    sU = sB + 8
    vVOFF = 2
    vKA = 6
    vVA = 14
    vPW, vPR = 18, 19
    vCTXH, vCTXR = 20, 21
    vLIM = 22
    vMAX, vNINF = 30, 31
    vQ = 32
    vS = 64
    vKF = 128
    vVF = 160
    vT = 160
    vTMP = 192
    vONE = 208
    vOOFF = 212
    vX, vOFF, vTT, vM32, vJ, vID = 213, 214, 215, 216, 217, 218
    vNMC = 219
    vNON = 220
    vZERO = 222
    vN2 = 228
    vNOFF = 221
    vST = 223
    vACO = 224
    vACL = 240
    t0, t1, t2, t3, t4, t5 = (vTMP + k for k in range(6))
    NT = " nt" if OPT["nt"] else ""

    def stamp(final=False):
        if not OPT["stamps"]:
            return
        if OPT.get("light") and not final:
            a.nstamp += 1
            return
        a("s_memrealtime %s" % sp(sSTP))
        a("s_waitcnt lgkmcnt(0)")
        a("v_writelane_b32 %s, s%d, %d" % (vr(vST), sSTP, a.nstamp))
        a.nstamp += 1

    def chain():
        a("v_mov_b32 %s, 0" % vr(vOFF))
        for b in range(1, 8):
            a("v_cmpx_le_u32 vcc, s%d, %s" % (sB + b, vr(vX)))
            a("v_mov_b32 %s, s%d" % (vr(vOFF), sD + b))
        a("s_mov_b64 exec, -1")
        a("v_add_u32 %s, %s, %s" % (vr(vTT), vr(vX), vr(vOFF)))

    def chunk_index():
        a("s_lshl_b32 s%d, s%d, 5" % (sT0, sR))
        a("s_add_u32 s%d, s%d, s%d" % (sCH, sI, sT0))

    def decode8():
        chunk_index()
        a("s_lshl2_add_u32 s%d, s%d, s%d" % (sT0, sCH, sW))
        a("s_mul_i32 s%d, s%d, s%d" % (sT1, sT0, sU))
        a("s_add_u32 s%d, s%d, s%d" % (sT2, sT1, sU))
        a("s_lshr_b32 s%d, s%d, s%d" % (sT1, sT1, sSH))
        a("s_lshr_b32 s%d, s%d, s%d" % (sT2, sT2, sSH))
        a("v_add_u32 %s, s%d, v1" % (vr(vX), sT1))
        chain()
        a("v_cmp_gt_u32 vcc, s%d, %s" % (sT2, vr(vX)))

    def decode32():
        chunk_index()
        a("s_lshl_b32 s%d, s%d, 2" % (sT0, sCH))
        a("v_lshrrev_b32 %s, 3, v1" % vr(t0))
        a("v_add_u32 %s, s%d, %s" % (vr(t0), sT0, vr(t0)))
        a("v_mul_u32_u24 %s, s%d, %s" % (vr(t0), sU, vr(t0)))
        a("v_add_u32 %s, s%d, %s" % (vr(t1), sU, vr(t0)))
        a("v_lshrrev_b32 %s, s%d, %s" % (vr(t0), sSH, vr(t0)))
        a("v_lshrrev_b32 %s, s%d, %s" % (vr(t1), sSH, vr(t1)))
        a("v_and_b32 %s, 7, v1" % vr(t2))
        a("v_add_u32 %s, %s, %s" % (vr(vX), vr(t0), vr(t2)))
        chain()
        a("v_cmp_gt_u32 vcc, %s, %s" % (vr(t1), vr(vX)))

    def maskinfo():
        a("v_and_b32 %s, 0xff, %s" % (vr(vJ), vr(vTT)))
        a("v_lshlrev_b32 %s, 4, %s" % (vr(vJ), vr(vJ)))
        a("v_lshrrev_b32 %s, 8, %s" % (vr(t1), vr(vTT)))
        a("v_lshlrev_b32 %s, 2, %s" % (vr(t1), vr(t1)))
        a("v_lshlrev_b32_e64 %s, %s, 15" % (vr(vM32), vr(t1)))
        a("v_cmp_gt_u32 %s, s%d, %s" % (sp(sMK), sS, vr(vX)))
        a("v_mov_b32 %s, -1" % vr(t1))
        a("s_nop 0")
        a("v_cndmask_b32 %s, %s, %s, %s" % (vr(vM32), vr(vM32), vr(t1), sp(sMK)))
        a("v_cndmask_b32 %s, 0, %s, vcc" % (vr(vM32), vr(vM32)))

    def ids_to_soff():
        a("v_mov_b32 %s, 0x%x" % (vr(t1), NPHYS))
        a("v_min_u32 %s, 0x%x, %s" % (vr(vID), NPHYS, vr(vID)))
        a("v_cndmask_b32 %s, %s, %s, vcc" % (vr(vID), vr(t1), vr(vID)))
        a("v_lshlrev_b32 %s, 15, %s" % (vr(vID), vr(vID)))

    def partition():
        vTO = vTMP + 8
        a("s_mov_b32 s%d, 0" % sBAD)
        a("s_load_dwordx8 s[%d:%d], %s, 0" % (sC, sC + 7, sp(sCTX)))
        a("v_lshlrev_b32 %s, 4, v1" % vr(vTO))
        a("v_add_u32 %s, 0x1000, %s" % (vr(vTO + 1), vr(vTO)))
        for b in range(8):
            a("global_load_dwordx4 %s, %s, %s offset:%d" % (
                vr(vT + 4 * b, 4), vr(vTO if b < 4 else vTO + 1), sp(sBT), (b & 3) * 1024))
        a("s_waitcnt lgkmcnt(0)")
        for b in range(8):
            a("s_cmp_lt_i32 s%d, 1" % (sC + b))
            a("s_cselect_b32 s%d, 0x1000, s%d" % (sC + b, sC + b))
            a("s_min_i32 s%d, s%d, 0x1000" % (sC + b, sC + b))
            a("s_add_i32 s%d, s%d, 15" % (sC + b, sC + b))
            a("s_lshr_b32 s%d, s%d, 4" % (sC + b, sC + b))
        a("s_max_u32 s%d, s%d, s%d" % (sT0, sC, sC + 1))
        for b in range(2, 8):
            a("s_max_u32 s%d, s%d, s%d" % (sT0, sT0, sC + b))
        a("s_waitcnt vmcnt(0)")
        for c in range(4):
            a("v_sad_u32 %s, %s, %s, 0" % (vr(t0 + c), vr(vT + 4 + c), vr(vT + c)))
        for b in range(2, 8):
            for c in range(4):
                a("v_sad_u32 %s, %s, %s, %s" % (vr(t0 + c), vr(vT + 4 * b + c), vr(vT + c), vr(t0 + c)))
        for c in range(4):
            a("v_cmp_ne_u32 %s, 0, %s" % (sp(sMK + 2 * c), vr(t0 + c)))
        a("s_nop 3")
        for c in range(4):
            a("s_ff1_i32_b64 s%d, %s" % (sJ16 + c, sp(sMK + 2 * c)))
            a("s_lshl2_add_u32 s%d, s%d, %d" % (sJ16 + c, sJ16 + c, c))
        a("s_min_u32 s%d, s%d, s%d" % (sS, sJ16, sJ16 + 1))
        a("s_min_u32 s%d, s%d, s%d" % (sS, sS, sJ16 + 2))
        a("s_min_u32 s%d, s%d, s%d" % (sS, sS, sJ16 + 3))
        a("s_min_u32 s%d, s%d, s%d" % (sS, sS, sT0))
        a("s_mov_b32 s%d, s%d" % (sB, sS))
        for b in range(8):
            a("s_sub_i32 s%d, s%d, s%d" % (sT1, sC + b, sS))
            a("s_max_i32 s%d, s%d, 0" % (sT1, sT1))
            a("s_add_u32 s%d, s%d, s%d" % (sB + b + 1, sB + b, sT1))
            if b >= 1:
                a("s_sub_u32 s%d, s%d, s%d" % (sD + b, sS, sB + b))
                a("s_add_u32 s%d, s%d, %d" % (sD + b, sD + b, 256 * b))
        a("s_cmp_gt_u32 s%d, 1024" % sU)
        a("s_cselect_b32 s%d, 8, 7" % sSH)
        a("s_cselect_b32 s%d, 2, 1" % sNR)
        a("s_mov_b32 s%d, 0" % sR)

    def srd(dst, p, n):
        a("s_mov_b32 s%d, s%d" % (dst, p))
        a("s_and_b32 s%d, s%d, 0xffff" % (dst + 1, p + 1))
        a("s_mov_b32 s%d, 0x%x" % (dst + 2, n))
        a("s_mov_b32 s%d, 0x20000" % (dst + 3))

    def nonce_wait(tag):
        a("s_mov_b32 s%d, 0" % sT3)
        a.lab("L_noncewait" + tag)
        a("v_readfirstlane_b32 s%d, %s" % (sNONCE, vr(vN2)))
        a("v_readfirstlane_b32 s%d, %s" % (sNONCE + 1, vr(vN2 + 1)))
        a("s_nop 1")
        a("s_cmp_lg_u32 s%d, 0" % sNONCE)
        a("s_cbranch_scc1 L_nonceok" + tag)
        a("s_add_u32 s%d, s%d, 1" % (sT3, sT3))
        a("s_cmp_gt_u32 s%d, 0x100000" % sT3)
        a("s_cbranch_scc1 L_nonceok" + tag)
        a("s_sleep 2")
        a("global_load_dwordx2 %s, %s, %s sc1" % (vr(vN2, 2), vr(vNOFF), sp(sDBG)))
        a("s_waitcnt vmcnt(0)")
        a("s_branch L_noncewait" + tag)
        a.lab("L_nonceok" + tag)

    def stampout(nw):
        a("s_mul_i32 s96, s2, 5")
        a("s_add_u32 s96, s96, s%d" % sW)
        a("s_lshl_b32 s96, s96, 6")
        a("s_add_u32 s96, s96, 0x%x" % WS_STAMP)
        a("v_lshlrev_b32 %s, 2, v1" % vr(t0))
        a("s_mov_b64 exec, 0xffff")
        a("buffer_store_dword %s, %s, %s, s96 offen" % (vr(vST), vr(t0), sq(SRDW)))
        a("s_endpgm")

    a.lab(NAME + "_kernel")
    a("s_cmp_ge_u32 s2, 256")
    a("s_cbranch_scc1 L_end")
    a("s_load_dwordx16 s[4:19], s[0:1], 0")
    a("v_and_b32 v1, 63, v0")
    a("v_lshrrev_b32 v2, 6, v0")
    a("s_and_b32 s%d, s2, 7" % sG)
    if OPT.get("perm"):
        packed = 0
        for x, g in enumerate(OPT["perm"]):
            packed |= g << (4 * x)
        a("s_lshl_b32 s%d, s%d, 2" % (sG, sG))
        a("s_lshr_b32 s%d, 0x%x, s%d" % (sG, packed, sG))
        a("s_and_b32 s%d, s%d, 7" % (sG, sG))
    a("s_lshr_b32 s%d, s2, 3" % sI)
    a("v_readfirstlane_b32 s%d, v2" % sW)
    if OPT["stamps"]:
        a("v_mov_b32 %s, 0" % vr(vST))
        a("s_memrealtime %s" % sp(96))
        a("s_waitcnt lgkmcnt(0)")
        a("v_writelane_b32 %s, s96, 0" % vr(vST))
        a.nstamp = 1
    a.c("predicted partition (verified against the real table / lengths below)")
    nb = [(c + 15) // 16 for c in PRED_CTX]
    B = [PRED_S]
    for b in range(8):
        B.append(B[-1] + max(nb[b] - PRED_S, 0))
    a("s_mov_b32 s%d, %d" % (sS, PRED_S))
    for k in range(9):
        a("s_mov_b32 s%d, %d" % (sB + k, B[k]))
    for b in range(1, 8):
        a("s_mov_b32 s%d, %d" % (sD + b, PRED_S - B[b] + 256 * b))
    a("s_mov_b32 s%d, 7" % sSH)
    a("s_mov_b32 s%d, 1" % sNR)
    a("s_mov_b32 s%d, 0" % sR)
    a("v_mov_b32 %s, 0" % vr(vZERO))
    a("s_cmp_lg_u32 s%d, 4" % sW)
    a("s_cbranch_scc1 C_entry")
    entry_lines = a.l
    a.l = []

    a.lab("C_entry")
    st0 = a.nstamp
    if OPT.get("skipcompute"):
        a("v_mov_b32 %s, 0" % vr(t0))
        a("s_lshl_b32 s%d, s%d, 15" % (sT0, sW))
        a("s_add_u32 s%d, s%d, %d" % (sT0, sT0, 3 * 8192))
        a("v_mov_b32 %s, s%d" % (vr(t1), sT0))
        for k in range(4):
            a("s_barrier")
        a("ds_write_b32 %s, %s" % (vr(t1), vr(t0)))
        a("s_waitcnt lgkmcnt(0)")
        for k in range(4):
            a("s_barrier")
        a("s_endpgm")
    a("s_lshl_b32 s%d, s%d, 15" % (sWB, sW))
    decode8()
    maskinfo()
    vTO, vQO, vCO = vTMP + 8, vTMP + 10, vTMP + 11
    a("v_lshlrev_b32 %s, 4, v1" % vr(vTO))
    a("s_lshl_b32 s%d, s%d, 11" % (sT0, sW))
    a("v_add_u32 %s, s%d, %s" % (vr(vTO), sT0, vr(vTO)))
    a("v_bfe_u32 %s, v1, 2, 3" % vr(t0))
    a("v_lshlrev_b32 %s, 2, %s" % (vr(vCO), vr(t0)))
    a("v_and_b32 %s, 31, v1" % vr(t0))
    a("v_lshrrev_b32 %s, 5, v1" % vr(t1))
    a("v_lshlrev_b32 %s, 4, %s" % (vr(t0), vr(t0)))
    a("v_lshl_add_u32 %s, %s, 11, %s" % (vr(t0), vr(t1), vr(t0)))
    a("s_lshl_b32 s%d, s%d, 9" % (sT1, sW))
    a("v_add_u32 %s, s%d, %s" % (vr(vOOFF), sT1, vr(t0)))
    a("s_waitcnt lgkmcnt(0)")
    stamp()
    a("s_load_dwordx8 s[%d:%d], %s, 0" % (sC, sC + 7, sp(sCTX)))
    a("global_load_dword %s, %s, %s" % (vr(vCTXR), vr(vCO), sp(sCTX)))
    vTS = 236
    for r in range(2):
        a("global_load_dwordx4 %s, %s, %s offset:%d" % (vr(vTS + 4 * r, 4), vr(vTO), sp(sBT), r * 1024))
    srd(SRDW, sWS, WS_SIZE)
    a("s_mov_b32 s%d, 0" % sQRD)
    if OPT["prewarm"]:
        a.c("address-translation warm-up for the record area and the output")
        a("s_lshl_b32 s%d, s%d, 6" % (sT0, sG))
        a("s_add_u32 s%d, s%d, s%d" % (sT0, sT0, sI))
        a("s_lshl_b32 s%d, s%d, 15" % (sT1, sT0))
        a("s_add_u32 s%d, s%d, 0x%x" % (sT1, sT1, WS_O))
        a("s_lshl_b32 s%d, s%d, 11" % (sT2, sT0))
        a("s_add_u32 s%d, s%d, 0x%x" % (sT2, sT2, WS_ML))
        a("buffer_load_dword %s, %s, %s, s%d offen" % (vr(vACO), vr(vZERO), sq(SRDW), sT1))
        a("buffer_load_dword %s, %s, %s, s%d offen" % (vr(vACO + 1), vr(vZERO), sq(SRDW), sT2))
        a("global_load_dword %s, %s, %s" % (vr(vACO + 2), vr(vZERO), sp(sOUT)))
    a.c("nonce: workgroup 0 / wave 0 publishes a per-launch tag in d_debug")
    a("s_or_b32 s%d, s2, s%d" % (sT0, sW))
    a("s_cmp_lg_u32 s%d, 0" % sT0)
    a("s_cbranch_scc1 L_nononce")
    a("s_memrealtime %s" % sp(96))
    a("s_waitcnt lgkmcnt(0)")
    a("s_or_b32 s96, s96, 1")
    a("v_mov_b32 %s, s96" % vr(t0))
    a("v_mov_b32 %s, s97" % vr(t1))
    a("v_lshlrev_b32 %s, 6, v1" % vr(t2))
    a("s_mov_b64 exec, 15")
    a("global_store_dwordx2 %s, %s, %s sc1" % (vr(t2), vr(t0, 2), sp(sDBG)))
    a("s_mov_b64 exec, -1")
    a.lab("L_nononce")
    a("s_and_b32 s%d, s%d, 3" % (sT0, sI))
    a("s_lshl_b32 s%d, s%d, 6" % (sT0, sT0))
    a("v_mov_b32 %s, s%d" % (vr(vNOFF), sT0))
    a.c("remaining lane constants")
    a("v_and_b32 %s, 31, v1" % vr(t0))
    a("v_lshrrev_b32 %s, 5, v1" % vr(t1))
    a("v_and_b32 %s, 3, v1" % vr(t2))
    a("v_bfe_u32 %s, v1, 2, 2" % vr(vTMP + 6))
    a("v_lshl_or_b32 %s, %s, 2, %s" % (vr(t2), vr(t2), vr(vTMP + 6)))
    a("v_xor_b32 %s, %s, %s" % (vr(t2), vr(t2), vr(t1)))
    a("v_lshlrev_b32 %s, 4, %s" % (vr(t2), vr(t2)))
    a("v_lshl_add_u32 %s, %s, 8, %s" % (vr(t2), vr(t0), vr(t2)))
    a("v_add_u32 %s, s%d, %s" % (vr(vKA), sWB, vr(t2)))
    for s in range(1, 8):
        a("v_xor_b32 %s, %d, %s" % (vr(vKA + s), s << 5, vr(vKA)))
    u0, u1, u2, u3, u4, u5 = (vLIM + k for k in range(6))
    a("v_bfe_u32 %s, v1, 2, 2" % vr(u0))
    a("v_lshrrev_b32 %s, 5, v1" % vr(u1))
    a("v_bfe_u32 %s, v1, 4, 1" % vr(u2))
    a("v_bfe_u32 %s, v1, 1, 1" % vr(u3))
    a("v_lshl_or_b32 %s, %s, 1, %s" % (vr(u2), vr(u2), vr(u3)))
    a("s_lshl_b32 s%d, s%d, 2" % (sT1, sW))
    a("v_or_b32 %s, s%d, %s" % (vr(u2), sT1, vr(u2)))
    for u in range(2):
        a("v_lshl_or_b32 %s, %s, 2, %s" % (vr(u3), vr(u0), vr(u1)))
        if u:
            a("v_or_b32 %s, 2, %s" % (vr(u3), vr(u3)))
        a("v_xor_b32 %s, %s, %s" % (vr(u3), vr(u3), vr(u2)))
        a("v_lshlrev_b32 %s, 4, %s" % (vr(u3), vr(u3)))
        a("v_lshl_add_u32 %s, %s, 2, %s" % (vr(u4), vr(u1), vr(u0)))
        a("v_add_u32 %s, %d, %s" % (vr(u4), 8 * u, vr(u4)))
        a("v_lshl_add_u32 %s, %s, 8, %s" % (vr(u3), vr(u4), vr(u3)))
        a("v_and_b32 %s, 1, v1" % vr(u5))
        a("v_lshl_add_u32 %s, %s, 3, %s" % (vr(vVA + u), vr(u5), vr(u3)))
        a("v_add_u32 %s, 0x10000, %s" % (vr(vVA + 2 + u), vr(vVA + u)))
    a("v_lshlrev_b32 %s, 4, v1" % vr(u0))
    a("v_add_u32 %s, 0x20000, %s" % (vr(vPR), vr(u0)))
    a("s_lshl_b32 s%d, s%d, 13" % (sT1, sW))
    a("v_add_u32 %s, s%d, %s" % (vr(vPW), sT1, vr(vPR)))
    a("v_mov_b32 %s, 0xff800000" % vr(vNINF))
    for k in range(4):
        a("v_mov_b32 %s, 0x3f803f80" % vr(vONE + k))
    a.c("verify the prediction: lengths (scalar) and table rows 2w, 2w+1")
    a("s_waitcnt lgkmcnt(0)")
    a("s_mov_b32 s%d, 0" % sBAD)
    for b in range(8):
        a("s_cmp_lg_u32 s%d, %d" % (sC + b, PRED_CTX[b]))
        a("s_cselect_b32 s%d, 1, s%d" % (sBAD, sBAD))
    a("s_waitcnt vmcnt(%d)" % (3 if OPT["prewarm"] else 0))
    a("v_lshrrev_b32 %s, 5, v1" % vr(u0))
    a("v_lshlrev_b32 %s, 7, %s" % (vr(u0), vr(u0)))
    a("v_lshlrev_b32 %s, 2, v1" % vr(u1))
    a("s_lshl_b32 s%d, s%d, 1" % (sT0, sW))
    a("v_mov_b32 %s, 0" % vr(u3))
    for r in range(2):
        a("v_mad_u32_u24 %s, %s, s%d, %s" % (vr(u2), vr(u0), sT0, vr(u1)))
        for c in range(4):
            a("v_add_u32 %s, %d, %s" % (vr(u4), c, vr(u2)))
            a("v_sad_u32 %s, %s, %s, %s" % (vr(u3), vr(vTS + 4 * r + c), vr(u4), vr(u3)))
        a("s_add_u32 s%d, s%d, 1" % (sT0, sT0))
    a("v_cmp_ne_u32 vcc, 0, %s" % vr(u3))
    a("s_nop 3")
    a("s_cmp_lg_u64 vcc, 0")
    a("s_cselect_b32 s%d, 1, s%d" % (sBAD, sBAD))
    a("s_branch C_body")

    a.lab("C_generic")
    partition()
    a.lab("C_round")
    decode8()
    maskinfo()

    a.lab("C_body")
    a("v_cmp_gt_i32 vcc, 1, %s" % vr(vCTXR))
    a("v_mov_b32 %s, 0x1000" % vr(t0))
    a("v_min_i32 %s, 0x1000, %s" % (vr(t1), vr(vCTXR)))
    a("v_cndmask_b32 %s, %s, %s, vcc" % (vr(t1), vr(t1), vr(t0)))
    a("v_lshrrev_b32 %s, 5, v1" % vr(t2))
    a("v_lshlrev_b32 %s, 2, %s" % (vr(t2), vr(t2)))
    a("v_sub_u32 %s, %s, %s" % (vr(vCTXH), vr(t1), vr(t2)))
    for u in range(8):
        a("v_readlane_b32 s%d, %s, %d" % (sJ16 + u, vr(vJ), u))
        a("v_readlane_b32 s%d, %s, %d" % (sMK + 2 * u, vr(vM32), u))
        a("v_readlane_b32 s%d, %s, %d" % (sMK + 2 * u + 1, vr(vM32), u))
    a("s_nop 1")
    for u in range(8):
        a("v_cndmask_b32 %s, 0, %s, %s" % (vr(vLIM + u), vr(vCTXH), sp(sMK + 2 * u)))
    for u in range(8):
        a("v_subrev_u32 %s, s%d, %s" % (vr(vLIM + u), sJ16 + u, vr(vLIM + u)))
    a("v_mov_b32 %s, %s" % (vr(vMAX), vr(vNINF)))
    a.c("relevance mask of the 8 batches for this chunk, record bases")
    sU0, sU1, sREL, sOB, sMB = sSOFF, sSOFF + 1, sSOFF + 2, sSOFF + 3, sSOFF + 4
    a("s_lshl_b32 s%d, s%d, 2" % (sT0, sCH))
    a("s_mul_i32 s%d, s%d, s%d" % (sU0, sT0, sU))
    a("s_lshl2_add_u32 s%d, s%d, s%d" % (sU1, sU, sU0))
    a("s_lshr_b32 s%d, s%d, s%d" % (sU0, sU0, sSH))
    a("s_lshr_b32 s%d, s%d, s%d" % (sU1, sU1, sSH))
    a("s_mov_b32 s%d, 0" % sREL)
    for b in range(8):
        a("s_cmp_lt_u32 s%d, s%d" % (sU0, sB + b + 1))
        a("s_cselect_b32 s%d, %d, 0" % (sT0, 1 << b))
        a("s_cmp_gt_u32 s%d, s%d" % (sU1, sB + b))
        a("s_cselect_b32 s%d, s%d, 0" % (sT0, sT0))
        a("s_or_b32 s%d, s%d, s%d" % (sREL, sREL, sT0))
    a("s_cmp_lt_u32 s%d, s%d" % (sU0, sS))
    a("s_cselect_b32 s%d, 0xff, s%d" % (sREL, sREL))
    a("s_lshl_b32 s%d, s%d, 6" % (sT0, sG))
    a("s_add_u32 s%d, s%d, s%d" % (sT0, sT0, sCH))
    a("s_lshl_b32 s%d, s%d, 14" % (sOB, sT0))
    a("s_add_u32 s%d, s%d, 0x%x" % (sOB, sOB, WS_O))
    a("s_lshl_b32 s%d, s%d, 11" % (sMB, sT0))
    a("s_add_u32 s%d, s%d, 0x%x" % (sMB, sMB, WS_ML))
    a("s_lshl_b32 s%d, s%d, 6" % (sT0, sW))
    a("s_add_u32 s%d, s%d, s%d" % (sMB, sMB, sT0))

    a.c("S phase")
    for t in range(4):
        a("s_barrier")
        stamp()
        if t == 0:
            a.c("Q fragments from the staged copy (first pass only); zero Q of empty-context batches")
            a("s_cmp_lg_u32 s%d, 0" % sQRD)
            a("s_cbranch_scc1 L_qdone")
            a("s_mov_b32 s%d, 1" % sQRD)
            a("s_sub_u32 s%d, 0x20000, s%d" % (sT0, sWB))
            for s in range(8):
                a("v_add_u32 %s, s%d, %s" % (vr(vVF + s), sT0, vr(vKA + s)))
            for s in range(8):
                a("ds_read_b128 %s, %s" % (vr(vQ + 4 * s, 4), vr(vVF + s)))
            a("v_cmp_lt_i32 vcc, 0, %s" % vr(vCTXR))
            a("s_nop 1")
            a("s_waitcnt lgkmcnt(0)")
            for k in range(32):
                a("v_cndmask_b32 %s, 0, %s, vcc" % (vr(vQ + k), vr(vQ + k)))
            a.lab("L_qdone")
        for s in range(8):
            a("ds_read_b128 %s, %s offset:%d" % (vr(vKF + 4 * s, 4), vr(vKA + s), t * 8192))
        for s in range(8):
            a("s_waitcnt lgkmcnt(%d)" % (7 - s))
            a("v_mfma_f32_32x32x16_bf16 %s, %s, %s, %s" % (
                vr(vS + 16 * t, 16), vr(vKF + 4 * s, 4), vr(vQ + 4 * s, 4),
                "0" if s == 0 else vr(vS + 16 * t, 16)))
        if t == 1:
            a("s_cmp_lg_u32 s%d, 0" % sW)
            a("s_cbranch_scc1 L_nonld")
            a("global_load_dwordx2 %s, %s, %s sc1" % (vr(vN2, 2), vr(vNOFF), sp(sDBG)))
            a.lab("L_nonld")
        a("s_nop 3")
        for half in range(2):
            u = 2 * t + half
            for r8 in range(8):
                const = 8 * ((r8 >> 2) & 1) + (r8 & 3)
                a("v_cmp_lt_i32 %s, %d, %s" % (sp(sMK + 2 * r8), const, vr(vLIM + u)))
            for r8 in range(8):
                r = vS + 16 * t + 8 * half + r8
                a("v_cndmask_b32 %s, %s, %s, %s" % (vr(r), vr(vNINF), vr(r), sp(sMK + 2 * r8)))
            for r8 in range(0, 8, 2):
                r = vS + 16 * t + 8 * half + r8
                a("v_max3_f32 %s, %s, %s, %s" % (vr(vMAX), vr(vMAX), vr(r), vr(r + 1)))
    a.c("max exchange: every wave writes {max[32], flag[32]} into the P area of every compute wave")
    a("s_cmp_lg_u32 s%d, 0" % sW)
    a("s_cbranch_scc1 L_nonw0")
    a("s_waitcnt vmcnt(0)")
    nonce_wait("C")
    a.lab("L_nonw0")
    a("v_mov_b32 %s, %s" % (vr(t0), vr(vMAX)))
    a("s_nop 1")
    a("v_permlane32_swap_b32 %s, %s" % (vr(vMAX), vr(t0)))
    a("v_mov_b32 %s, s%d" % (vr(t1), sBAD))
    a("v_cmp_gt_u32 vcc, 32, v1")
    a("v_max_f32 %s, %s, %s" % (vr(vMAX), vr(vMAX), vr(t0)))
    a("v_lshlrev_b32 %s, 2, v1" % vr(t2))
    a("v_cndmask_b32 %s, %s, %s, vcc" % (vr(t3), vr(t1), vr(vMAX)))
    a("v_writelane_b32 %s, s%d, 62" % (vr(t3), sNONCE))
    a("v_writelane_b32 %s, s%d, 63" % (vr(t3), sNONCE + 1))
    a("v_writelane_b32 %s, s%d, 2" % (vr(t1), sNONCE))
    a("v_writelane_b32 %s, s%d, 3" % (vr(t1), sNONCE + 1))
    a("s_lshl_b32 s%d, s%d, 8" % (sT0, sW))
    a("s_add_u32 s%d, s%d, 0x20000" % (sT0, sT0))
    a("v_add_u32 %s, s%d, %s" % (vr(t2), sT0, vr(t2)))
    for w in range(4):
        a("ds_write_b32 %s, %s offset:%d" % (vr(t2), vr(t3), w * 8192))
    a("s_add_u32 s%d, s%d, %d" % (sT0, sWB, 3 * 8192))
    a("v_lshlrev_b32 %s, 2, v1" % vr(t2))
    a("v_add_u32 %s, s%d, %s" % (vr(t2), sT0, vr(t2)))
    a("ds_write_b32 %s, %s" % (vr(t2), vr(t1)))
    a("v_and_b32 %s, 31, v1" % vr(t3))
    a("v_lshlrev_b32 %s, 2, %s" % (vr(t3), vr(t3)))
    a("s_lshl_b32 s%d, s%d, 13" % (sT0, sW))
    a("s_add_u32 s%d, s%d, 0x20000" % (sT0, sT0))
    a("v_add_u32 %s, s%d, %s" % (vr(t3), sT0, vr(t3)))
    a("s_waitcnt lgkmcnt(0)")
    a("s_barrier")
    stamp()
    X = vKF
    for w in range(4):
        a("ds_read2_b32 %s, %s offset0:%d offset1:%d" % (vr(X + 2 * w, 2), vr(t3), w * 64, w * 64 + 32))
    a("v_mov_b32 %s, s%d" % (vr(t4), sT0))
    a("ds_read_b64 %s, %s offset:248" % (vr(X + 8, 2), vr(t4)))
    a("s_waitcnt lgkmcnt(0)")
    a("v_readfirstlane_b32 s%d, %s" % (sNONCE, vr(X + 8)))
    a("v_readfirstlane_b32 s%d, %s" % (sNONCE + 1, vr(X + 9)))
    a("v_or3_b32 %s, %s, %s, %s" % (vr(t0), vr(X + 1), vr(X + 3), vr(X + 5)))
    a("v_or_b32 %s, %s, %s" % (vr(t0), vr(t0), vr(X + 7)))
    a("v_max3_f32 %s, %s, %s, %s" % (vr(vMAX), vr(X), vr(X + 2), vr(X + 4)))
    a("v_readfirstlane_b32 s%d, %s" % (sT0, vr(t0)))
    a("v_mov_b32 %s, %s" % (vr(t0), f32hex(-1e30)))
    a("v_max3_f32 %s, %s, %s, %s" % (vr(vMAX), vr(vMAX), vr(X + 6), vr(t0)))
    a("s_nop 1")
    a("s_cmp_lg_u32 s%d, 0" % sT0)
    a("s_cbranch_scc1 C_fallback")
    a("s_mov_b32 s%d, %s" % (sT0, f32hex(SCALE_LOG2)))
    a("v_mul_f32 %s, %s, %s" % (vr(vNMC), f32hex(-SCALE_LOG2), vr(vMAX)))
    a.c("P phase (+ row sums of this wave's P through a ones-MFMA)")
    GA, GB = vTMP + 8, vTMP + 12
    for u in range(8):
        base = vS + 8 * u
        for k in range(8):
            a("v_fma_f32 %s, %s, s%d, %s" % (vr(base + k), vr(base + k), sT0, vr(vNMC)))
        for k in range(8):
            a("v_exp_f32 %s, %s" % (vr(base + k), vr(base + k)))
        pk = vTMP + 4 * (u & 1)
        for k in range(4):
            a("v_cvt_pk_bf16_f32 %s, %s, %s" % (vr(pk + k), vr(base + 2 * k), vr(base + 2 * k + 1)))
        a("ds_write_b128 %s, %s offset:%d" % (vr(vPW), vr(pk, 4), u * 1024))
        a("s_nop 0")
        a("v_mfma_f32_32x32x16_bf16 %s, %s, %s, %s" % (
            vr(vACL, 16), vr(vONE, 4), vr(pk, 4), "0" if u == 0 else vr(vACL, 16)))
    a("s_waitcnt vmcnt(0)")
    a("v_mov_b32 %s, s%d" % (vr(GA + 2), sNONCE))
    a("v_mov_b32 %s, s%d" % (vr(GA + 3), sNONCE + 1))
    a("v_bfe_u32 %s, v1, 2, 3" % vr(t4))
    if OPT.get("skippub"):
        a("s_mov_b32 s%d, 0" % sREL)
    a("v_lshrrev_b32_e64 %s, %s, s%d" % (vr(t5), vr(t4), sREL))
    a("v_and_b32 %s, 1, %s" % (vr(t5), vr(t5)))
    a("v_cmp_eq_u32 vcc, 1, %s" % vr(t5))
    a("v_lshlrev_b32 %s, 8, %s" % (vr(t4), vr(t4)))
    a("v_and_b32 %s, 3, v1" % vr(t5))
    a("v_lshl_add_u32 %s, %s, 4, %s" % (vr(t4), vr(t5), vr(t4)))
    a("v_mov_b32 %s, %s" % (vr(GA), vr(vMAX)))
    a("s_nop 3")
    a("v_mov_b32 %s, %s" % (vr(GA + 1), vr(vACL)))
    a("s_and_b32 exec_lo, vcc_lo, -1")
    a("s_mov_b32 exec_hi, 0")
    a("s_cbranch_execz L_noml2")
    a("buffer_store_dwordx4 %s, %s, %s, s%d offen sc1" % (vr(GA, 4), vr(t4), sq(SRDW), sMB))
    a.lab("L_noml2")
    a("s_mov_b64 exec, -1")
    a("s_waitcnt lgkmcnt(0)")
    a("s_barrier")
    stamp()
    GC = vTMP
    sSEL = sJ16
    a("s_mov_b32 s%d, 0x07060503" % sSEL)
    a("s_mov_b32 s%d, 0x07060502" % (sSEL + 1))
    a("s_mov_b32 s%d, 0x07060501" % (sSEL + 2))
    a("v_mov_b32 %s, s%d" % (vr(GB + 3), sNONCE))
    a("v_mov_b32 %s, s%d" % (vr(GC + 3), sNONCE))
    a.c("PV phase")
    PF = lambda k: vS + 4 * (k & 15)
    VF = lambda k: vKF + 4 * (k & 15)

    def rd_p(t, k8):
        w, s_ = k8 >> 1, k8 & 1
        a("ds_read_b128 %s, %s offset:%d" % (vr(PF(8 * t + k8), 4), vr(vPR), (w * 8 + 2 * t + s_) * 1024))

    def rd_v(t, k8):
        w, s_ = k8 >> 1, k8 & 1
        for u in range(2):
            a("ds_read_b64_tr_b16 %s, %s offset:%d" % (
                vr(VF(8 * t + k8) + 2 * u, 2), vr(vVA + 2 * (w >> 1) + u),
                (w & 1) * 32768 + t * 8192 + s_ * 4096))

    def mf_l(t, k8):
        a("v_mfma_f32_32x32x16_bf16 %s, %s, %s, %s" % (
            vr(vACL, 16), vr(vONE, 4), vr(PF(8 * t + k8), 4),
            "0" if (t == 0 and k8 == 0) else vr(vACL, 16)))

    def mf_o(t, k8):
        a("v_mfma_f32_32x32x16_bf16 %s, %s, %s, %s" % (
            vr(vACO, 16), vr(PF(8 * t + k8), 4), vr(VF(8 * t + k8), 4),
            "0" if (t == 0 and k8 == 0) else vr(vACO, 16)))

    seq = [(t, k) for t in range(2) for k in range(8)]
    for i in range(4):
        rd_p(*seq[i])
        rd_v(*seq[i])
    for i, (t, k) in enumerate(seq):
        ahead = min(3, len(seq) - 1 - i)
        a("s_waitcnt lgkmcnt(%d)" % (3 * ahead))
        mf_o(t, k)
        if i + 4 < len(seq):
            rd_p(*seq[i + 4])
            rd_v(*seq[i + 4])
    for t in (2, 3):
        for k in range(8):
            rd_p(t, k)
    a("s_mul_i32 s%d, s%d, 896" % (sT3, sNR))
    for t in (2, 3):
        if t == 2:
            a("s_waitcnt lgkmcnt(0)")
        a("s_barrier")
        stamp()
        if t == 2:
            for k in range(8):
                rd_v(t, k)
            for k in range(8):
                a("s_waitcnt lgkmcnt(%d)" % (14 - 2 * k))
                mf_o(t, k)
        else:
            for k in (0, 2, 4, 6):
                rd_v(t, k)
            for j, k in enumerate((0, 2, 4, 6)):
                a("s_waitcnt lgkmcnt(%d)" % (6 - 2 * j))
                mf_o(t, k)
            a("s_cmp_le_u32 s%d, s%d" % (sU, sT3))
            a("s_cbranch_scc1 L_pv3done")
            for k in (1, 3, 5, 7):
                rd_v(t, k)
            for j, k in enumerate((1, 3, 5, 7)):
                a("s_waitcnt lgkmcnt(%d)" % (6 - 2 * j))
                mf_o(t, k)
            a.lab("L_pv3done")
    a("s_nop 8")
    a.c("publish O: {head0|x, head1|y, head2|z, tag}, head 3 = bytes x,y,z")
    for gq in range(4):
        q = GB if (gq & 1) == 0 else GC
        a("s_bfe_i32 exec_lo, s%d, 0x%x" % (sREL, 0x10000 | (2 * gq)))
        a("s_bfe_i32 exec_hi, s%d, 0x%x" % (sREL, 0x10000 | (2 * gq + 1)))
        a("s_add_u32 s%d, s%d, %d" % (sT2, sOB, gq * 4096))
        a("s_cbranch_execz L_skipo%d" % gq)
        for k in range(3):
            a("v_perm_b32 %s, %s, %s, s%d" % (vr(q + k), vr(vACO + 4 * gq + k), vr(vACO + 4 * gq + 3), sSEL + k))
        a("buffer_store_dwordx4 %s, %s, %s, s%d offen sc1" % (vr(q, 4), vr(vOOFF), sq(SRDW), sT2))
        a.lab("L_skipo%d" % gq)
    a("s_mov_b64 exec, -1")
    stamp(True)
    a("s_add_u32 s%d, s%d, 1" % (sR, sR))
    a("s_cmp_ge_u32 s%d, s%d" % (sR, sNR))
    if OPT["stamps"]:
        a("s_cbranch_scc1 C_stampout")
    else:
        a("s_cbranch_scc1 L_end")
    a("s_waitcnt vmcnt(0)")
    a("s_barrier")
    a("s_branch C_round")
    a.lab("C_fallback")
    a("s_waitcnt vmcnt(0) lgkmcnt(0)")
    a("s_barrier")
    a("s_branch C_generic")
    if OPT["stamps"]:
        a.lab("C_stampout")
        stampout(5)

    compute_lines = a.l
    a.l = []
    a.lab("LD_entry")
    a.nstamp = st0
    if OPT.get("prio"):
        a("s_setprio 3")
    a("v_lshrrev_b32 %s, 4, v1" % vr(t0))
    a("v_and_b32 %s, 15, v1" % vr(t1))
    a("s_lshl_b32 s%d, s%d, 8" % (sT0, sG))
    for p in range(4):
        a("v_lshl_or_b32 %s, %s, 2, %d" % (vr(t2), vr(t0), p))
        a("v_xor_b32 %s, %s, %s" % (vr(t2), vr(t2), vr(t1)))
        a("v_lshlrev_b32 %s, 4, %s" % (vr(t2), vr(t2)))
        a("v_lshl_add_u32 %s, %s, 11, %s" % (vr(t2), vr(t0), vr(t2)))
        a("v_add_u32 %s, %d, %s" % (vr(t2), p * 8192 - 1024 * p, vr(t2)))
        a("v_add_u32 %s, s%d, %s" % (vr(vVOFF + p), sT0, vr(t2)))
    decode32()
    a("v_lshrrev_b32 %s, 8, %s" % (vr(t0), vr(vTT)))
    a("v_and_b32 %s, 0xff, %s" % (vr(vID), vr(vTT)))
    a("v_lshl_add_u32 %s, %s, 7, %s" % (vr(vID), vr(t0), vr(vID)))
    ids_to_soff()
    vQV = 32
    a("v_lshrrev_b32 %s, 4, v1" % vr(t0))
    a("v_and_b32 %s, 15, v1" % vr(t1))
    for p in range(4):
        a("v_lshl_or_b32 %s, %s, 2, %d" % (vr(t2), vr(t0), p))
        a("v_xor_b32 %s, %s, %s" % (vr(t2), vr(t2), vr(t1)))
        a("v_lshlrev_b32 %s, 4, %s" % (vr(t2), vr(t2)))
        a("v_lshl_add_u32 %s, %s, 8, %s" % (vr(vQV + p), vr(t0), vr(t2)))
    a("s_waitcnt lgkmcnt(0)")
    stamp()
    srd(SRDW, sQ, 65536)
    a("s_lshl_b32 s%d, s%d, 10" % (sT0, sG))
    for b in range(8):
        a("s_mov_b32 m0, %d" % (0x20000 + b * 1024))
        a("s_add_u32 s%d, s%d, %d" % (sT1, sT0, b * 8192))
        a("buffer_load_dwordx4 %s, %s, s%d offen lds" % (vr(vQV + (b & 3)), sq(SRDW), sT1))
    srd(SRDK, sK, KV_BYTES)
    srd(SRDV, sV, KV_BYTES)
    srd(SRDW, sWS, WS_SIZE)
    main_lines = a.l
    a.l = []
    a.lab("LD_generic")
    partition()
    a.lab("LD_round")
    decode32()
    a("v_lshlrev_b32 %s, 2, %s" % (vr(t0), vr(vTT)))
    a("s_nop 0")
    a("v_cndmask_b32 %s, 0, %s, vcc" % (vr(t0), vr(t0)))
    a("global_load_dword %s, %s, %s" % (vr(vID), vr(t0), sp(sBT)))
    a("s_waitcnt vmcnt(0)")
    ids_to_soff()
    a("s_nop 1")
    a("s_branch LD_issue")
    ldgen_lines = a.l
    a.l = main_lines
    a.lab("LD_issue")

    def rnd(r, waves=(0, 1, 2, 3)):
        srdx = SRDK if r < 4 else SRDV
        rr = r & 3
        base = sSOFF if (r & 1) == 0 else sJ16
        for wv in waves:
            for s in range(2):
                a("v_readlane_b32 s%d, %s, %d" % (base + 2 * wv + s, vr(vID), 8 * wv + 2 * rr + s))
        if len(waves) < 4:
            a("s_nop 1")
        for wv in waves:
            for s in range(2):
                a("s_mov_b32 m0, %d" % (wv * 32768 + (2 * rr + s) * 4096))
                a("s_nop 0")
                for p in range(4):
                    a("buffer_load_dwordx4 %s, %s, s%d offen offset:%d%s lds" % (
                        vr(vVOFF + p), sq(srdx), base + 2 * wv + s, 1024 * p, NT))

    rnd(0)
    rnd(1)
    rnd(2)
    a("s_waitcnt vmcnt(62)")
    stamp()
    a("s_barrier")
    rnd(3)
    a("s_waitcnt vmcnt(62)")
    stamp()
    a("s_barrier")
    rnd(4)
    a("s_waitcnt vmcnt(62)")
    stamp()
    a("s_barrier")
    rnd(5)
    a("s_waitcnt vmcnt(62)")
    stamp()
    a("s_barrier")
    rnd(6, (0, 1))
    stamp()
    a("s_barrier")
    a("v_mov_b32 %s, %d" % (vr(t0), 3 * 8192))
    a("v_mov_b32 %s, %d" % (vr(t1), 3 * 8192 + 65536))
    a("ds_read_b32 %s, %s" % (vr(t2), vr(t0)))
    a("ds_read_b32 %s, %s offset:32768" % (vr(t3), vr(t0)))
    a("ds_read_b32 %s, %s" % (vr(t4), vr(t1)))
    a("ds_read_b32 %s, %s offset:32768" % (vr(t5), vr(t1)))
    a("ds_read_b64 %s, %s offset:8" % (vr(vNON, 2), vr(t0)))
    a("s_waitcnt lgkmcnt(0)")
    a("v_readfirstlane_b32 s%d, %s" % (sNONCE, vr(vNON)))
    a("v_readfirstlane_b32 s%d, %s" % (sNONCE + 1, vr(vNON + 1)))
    a("v_or3_b32 %s, %s, %s, %s" % (vr(t2), vr(t2), vr(t3), vr(t4)))
    a("v_or_b32 %s, %s, %s" % (vr(t2), vr(t2), vr(t5)))
    a("s_nop 0")
    a("v_readfirstlane_b32 s%d, %s" % (sT0, vr(t2)))
    a("s_nop 1")
    a("s_cmp_lg_u32 s%d, 0" % sT0)
    a("s_cbranch_scc1 LD_fallback")
    rnd(6, (2, 3))
    rnd(7)
    a("s_waitcnt vmcnt(62)")
    stamp()
    a("s_barrier")
    sBt, sQD, sN1, sA2, sN, sKK, sB0, sB1, sGB, sSPIN, sCNT, sPEND = 64, 65, 66, 67, 68, 69, 70, 71, 72, 73, 74, 75
    sM = 76
    sHALF = 78
    sREC = 80
    sOUTB = 92
    sS1, sS2 = 93, 94
    SRDO = 20
    NP = NSLOT // 2
    vCST, vMO = 6, 8
    vMR, vLA, vOA, vNM, vSC, vRL = 10, 14, 18, 22, 26, 30
    vA0, vA1 = 34, 35
    vLW, vLR, vSL, vOB = 36, 37, 38, 39
    vAD = 40
    vY = 48
    vML = 240
    vD = 64
    vW = 96
    a("s_lshr_b32 s%d, s%d, 2" % (sBt, sI))
    a("s_and_b32 s%d, s%d, 3" % (sQD, sI))
    a("s_mov_b32 s%d, s%d" % (sB0, sB))
    a("s_mov_b32 s%d, s%d" % (sB1, sB + 1))
    for b in range(1, 8):
        a("s_cmp_eq_u32 s%d, %d" % (sBt, b))
        a("s_cselect_b32 s%d, s%d, s%d" % (sB0, sB + b, sB0))
        a("s_cselect_b32 s%d, s%d, s%d" % (sB1, sB + b + 1, sB1))
    a("v_lshlrev_b32 %s, 2, v1" % vr(vCST))
    a("v_mul_lo_u32 %s, %s, s%d" % (vr(vCST), vr(vCST), sU))
    a("v_lshrrev_b32 %s, s%d, %s" % (vr(vCST), sSH, vr(vCST)))
    a("s_sub_u32 s%d, s%d, 2" % (sT0, sSH))
    a("s_lshl_b32 s%d, 1, s%d" % (sT0, sT0))
    a("v_cmp_gt_u32 %s, s%d, v1" % (sp(sM), sT0))
    a("v_cmp_gt_u32 vcc, s%d, %s" % (sS, vr(vCST)))
    a("s_and_b64 vcc, vcc, %s" % sp(sM))
    a("s_bcnt1_i32_b64 s%d, vcc" % sN1)
    a("v_cmp_ge_u32 vcc, s%d, %s" % (sB0, vr(vCST)))
    a("s_and_b64 vcc, vcc, %s" % sp(sM))
    a("s_bcnt1_i32_b64 s%d, vcc" % sA2)
    a("s_sub_u32 s%d, s%d, 1" % (sA2, sA2))
    a("s_max_u32 s%d, s%d, s%d" % (sA2, sA2, sN1))
    a("v_cmp_gt_u32 vcc, s%d, %s" % (sB1, vr(vCST)))
    a("s_and_b64 vcc, vcc, %s" % sp(sM))
    a("s_bcnt1_i32_b64 s%d, vcc" % sT1)
    a("s_sub_i32 s%d, s%d, s%d" % (sT1, sT1, sA2))
    a("s_max_i32 s%d, s%d, 0" % (sT1, sT1))
    a("s_cmp_gt_u32 s%d, s%d" % (sB1, sB0))
    a("s_cselect_b32 s%d, s%d, 0" % (sT1, sT1))
    a("s_add_u32 s%d, s%d, s%d" % (sN, sN1, sT1))
    a("s_sub_u32 s%d, s%d, s%d" % (sA2, sA2, sN1))
    a("s_lshl_b32 s%d, s%d, 6" % (sGB, sG))
    a("v_and_b32 %s, 31, v1" % vr(vA0))
    a("v_lshrrev_b32 %s, 5, v1" % vr(vA1))
    a("s_mov_b32 s%d, 0" % sHALF)
    a("s_mov_b32 s%d, -1" % (sHALF + 1))
    a("v_lshlrev_b32 %s, 4, %s" % (vr(vOB), vr(vA0)))
    a("s_lshl_b32 s%d, s%d, 9" % (sT0, sQD))
    a("s_lshl_b32 s%d, s%d, 11" % (sT1, sBt))
    a("s_add_u32 s%d, s%d, s%d" % (sT0, sT0, sT1))
    a("s_add_u32 s%d, s%d, 0x%x" % (sT0, sT0, WS_O))
    a("v_add_u32 %s, s%d, %s" % (vr(vOB), sT0, vr(vOB)))
    a("v_lshlrev_b32 %s, 2, v1" % vr(vLW))
    a("v_lshlrev_b32 %s, 4, %s" % (vr(vLR), vr(vA1)))
    a("v_lshrrev_b32 %s, 2, v1" % vr(vSL))
    a("v_mov_b32 %s, %s" % (vr(vMR), f32hex(-1e30)))
    a("v_mov_b32 %s, 0" % vr(vLA))
    for k in range(4):
        a("v_mov_b32 %s, 0" % vr(vOA + k))
    a("s_mov_b32 s%d, 0" % sKK)
    a("s_mov_b32 s%d, 0x04000c0c" % sS1)
    a("s_mov_b32 s%d, 0x0706000c" % sS2)
    a("s_lshl_b32 s%d, s%d, 13" % (sOUTB, sBt))
    a("s_lshl_b32 s%d, s%d, 10" % (sT1, sG))
    a("s_add_u32 s%d, s%d, s%d" % (sOUTB, sOUTB, sT1))
    a("s_lshl_b32 s%d, s%d, 6" % (sT1, sQD))
    a("s_add_u32 s%d, s%d, s%d" % (sOUTB, sOUTB, sT1))

    def recs():
        a("s_sub_u32 s%d, s%d, s%d" % (sCNT, sN, sKK))
        for p in range(NSLOT):
            a("s_add_u32 s%d, s%d, %d" % (sT0, sKK, p))
            a("s_cmp_gt_u32 s%d, %d" % (sCNT, p))
            a("s_cselect_b32 s%d, s%d, s%d" % (sT0, sT0, sKK))
            a("s_add_u32 s%d, s%d, s%d" % (sT1, sT0, sA2))
            a("s_cmp_lt_u32 s%d, s%d" % (sT0, sN1))
            a("s_cselect_b32 s%d, s%d, s%d" % (sT0, sT0, sT1))
            a("s_add_u32 s%d, s%d, s%d" % (sT0, sT0, sGB))
            a("s_lshl_b32 s%d, s%d, 14" % (sREC + p, sT0))
        for j in range(NP):
            a("v_mov_b32 %s, s%d" % (vr(vY), sREC + 2 * j))
            a("v_mov_b32 %s, s%d" % (vr(vY + 1), sREC + 2 * j + 1))
            a("v_cndmask_b32 %s, %s, %s, %s" % (vr(vY), vr(vY), vr(vY + 1), sp(sHALF)))
            a("v_add_u32 %s, %s, %s" % (vr(vAD + j), vr(vY), vr(vOB)))
        a("v_add_u32 %s, s%d, %s" % (vr(vY), sKK, vr(vSL)))
        a("v_mov_b32 %s, s%d" % (vr(vY + 1), sKK))
        a("v_cmp_gt_u32 vcc, s%d, %s" % (sCNT, vr(vSL)))
        a("v_cmp_gt_u32 %s, %d, %s" % (sp(sM), NSLOT, vr(vSL)))
        a("s_and_b64 vcc, vcc, %s" % sp(sM))
        a("s_nop 1")
        a("v_cndmask_b32 %s, %s, %s, vcc" % (vr(vY), vr(vY + 1), vr(vY)))
        a("v_add_u32 %s, s%d, %s" % (vr(vY + 1), sA2, vr(vY)))
        a("v_cmp_gt_u32 vcc, s%d, %s" % (sN1, vr(vY)))
        a("s_nop 1")
        a("v_cndmask_b32 %s, %s, %s, vcc" % (vr(vY), vr(vY + 1), vr(vY)))
        a("v_add_u32 %s, s%d, %s" % (vr(vY), sGB, vr(vY)))
        a("v_lshlrev_b32 %s, 11, %s" % (vr(vY), vr(vY)))
        a("v_and_b32 %s, 3, v1" % vr(vY + 1))
        a("v_lshl_add_u32 %s, %s, 4, %s" % (vr(vY), vr(vY + 1), vr(vY)))
        a("s_lshl_b32 s%d, s%d, 8" % (sT0, sBt))
        a("s_add_u32 s%d, s%d, 0x%x" % (sT0, sT0, WS_ML))
        a("v_add_u32 %s, s%d, %s" % (vr(vMO), sT0, vr(vY)))
    recs()
    a("v_lshlrev_b32 %s, 9, %s" % (vr(vA1), vr(vA1)))
    a("v_lshl_add_u32 %s, %s, 1, %s" % (vr(vA1), vr(vA0), vr(vA1)))
    a("s_waitcnt vmcnt(32)")
    stamp()
    a("s_barrier")

    def ml_loads():
        for w in range(4):
            a("buffer_load_dwordx4 %s, %s, %s, 0 offen offset:%d sc1" % (vr(vML + 4 * w, 4), vr(vMO), sq(SRDW), 64 * w))
    ml_loads()
    a("s_waitcnt vmcnt(4)")
    stamp(True)
    a("s_barrier")
    a("s_waitcnt vmcnt(0)")
    a("s_add_u32 s%d, s%d, 1" % (sR, sR))
    a("s_cmp_ge_u32 s%d, s%d" % (sR, sNR))
    a("s_cbranch_scc1 LD_combine")
    a("s_barrier")
    a("s_branch LD_round")
    a.lab("LD_fallback")
    a("s_waitcnt vmcnt(0) lgkmcnt(0)")
    a("s_barrier")
    a("s_branch LD_generic")

    a.lab("LD_combine")
    a("s_mov_b32 s%d, %s" % (sT3, f32hex(SCALE_LOG2)))
    a("s_mov_b32 s%d, 0" % sSPIN)
    a("s_branch L_chkml")
    a.lab("L_cbatch")
    a("s_mov_b32 s%d, 0" % sSPIN)
    a.lab("L_pollml")
    ml_loads()
    a("s_waitcnt vmcnt(0)")
    a.lab("L_chkml")
    a("v_cmp_eq_u64 vcc, %s, %s" % (sp(sNONCE), vr(vML + 2, 2)))
    for w in range(1, 4):
        a("v_cmp_eq_u64 %s, %s, %s" % (sp(sM), sp(sNONCE), vr(vML + 4 * w + 2, 2)))
        a("s_and_b64 vcc, vcc, %s" % sp(sM))
    a("s_or_b32 vcc_hi, vcc_hi, 0x%x" % (0xffffffff & ~((1 << (4 * NSLOT - 32)) - 1)))
    a("s_cmp_eq_u64 vcc, -1")
    a("s_cbranch_scc1 L_mlok")
    a("s_add_u32 s%d, s%d, 1" % (sSPIN, sSPIN))
    a("s_cmp_gt_u32 s%d, 0x40000" % sSPIN)
    a("s_cbranch_scc1 L_end")
    a("s_branch L_pollml")
    a.lab("L_mlok")
    vMl, vLl, vMx, vTs, vWt = vY, vY + 1, vY + 2, vY + 3, vY + 4
    vZ = vY + 5
    a("v_cmp_gt_u32 vcc, s%d, %s" % (sCNT, vr(vSL)))
    a("v_cmp_gt_u32 %s, %d, %s" % (sp(sM), NSLOT, vr(vSL)))
    a("v_add_f32 %s, %s, %s" % (vr(vML + 1), vr(vML + 1), vr(vML + 5)))
    a("v_add_f32 %s, %s, %s" % (vr(vML + 9), vr(vML + 9), vr(vML + 13)))
    a("s_and_b64 vcc, vcc, %s" % sp(sM))
    a("v_mov_b32 %s, %s" % (vr(vZ), f32hex(-1e30)))
    a("v_add_f32 %s, %s, %s" % (vr(vML + 1), vr(vML + 1), vr(vML + 9)))
    a("v_cndmask_b32 %s, %s, %s, vcc" % (vr(vMl), vr(vZ), vr(vML)))
    a("v_cndmask_b32 %s, 0, %s, vcc" % (vr(vLl), vr(vML + 1)))

    def allreduce(op, x):
        a("s_nop 1")
        a("%s_dpp %s, %s, %s row_ror:4 row_mask:0xf bank_mask:0xf" % (op, vr(x), vr(x), vr(x)))
        a("s_nop 1")
        a("%s_dpp %s, %s, %s row_ror:8 row_mask:0xf bank_mask:0xf" % (op, vr(x), vr(x), vr(x)))
        a("v_mov_b32 %s, %s" % (vr(vZ), vr(x)))
        a("s_nop 1")
        a("v_permlane16_swap_b32 %s, %s" % (vr(x), vr(vZ)))
        a("s_nop 1")
        a("%s %s, %s, %s" % (op, vr(x), vr(x), vr(vZ)))
        a("v_mov_b32 %s, %s" % (vr(vZ), vr(x)))
        a("s_nop 1")
        a("v_permlane32_swap_b32 %s, %s" % (vr(x), vr(vZ)))
        a("s_nop 1")
        a("%s %s, %s, %s" % (op, vr(x), vr(x), vr(vZ)))

    a("v_max_f32 %s, %s, %s" % (vr(vMx), vr(vMl), vr(vMR)))
    allreduce("v_max_f32", vMx)
    a("v_mul_f32 %s, %s, %s" % (vr(vZ), f32hex(-SCALE_LOG2), vr(vMx)))
    a("v_fma_f32 %s, %s, s%d, %s" % (vr(vWt), vr(vMl), sT3, vr(vZ)))
    a("v_fma_f32 %s, %s, s%d, %s" % (vr(vSC), vr(vMR), sT3, vr(vZ)))
    a("v_exp_f32 %s, %s" % (vr(vWt), vr(vWt)))
    a("v_exp_f32 %s, %s" % (vr(vSC), vr(vSC)))
    a("v_mov_b32 %s, %s" % (vr(vMR), vr(vMx)))
    a("v_mul_f32 %s, %s, %s" % (vr(vTs), vr(vWt), vr(vLl)))
    allreduce("v_add_f32", vTs)
    a("v_fma_f32 %s, %s, %s, %s" % (vr(vLA), vr(vLA), vr(vSC), vr(vTs)))
    a("v_cmp_eq_u32 vcc, 12, %s" % vr(vSL))
    a("v_rcp_f32 %s, %s" % (vr(vTs), vr(vLA)))
    a("v_cmp_eq_u32 %s, 13, %s" % (sp(sM), vr(vSL)))
    a("s_nop 0")
    a("v_cndmask_b32 %s, %s, %s, vcc" % (vr(vWt), vr(vWt), vr(vSC)))
    a("v_cndmask_b32 %s, %s, %s, %s" % (vr(vWt), vr(vWt), vr(vTs), sp(sM)))
    a("ds_write_b32 %s, %s" % (vr(vLW), vr(vWt)))
    stamp()
    for j in range(NP):
        a("ds_read_b128 %s, %s offset:%d" % (vr(vW + 4 * j, 4), vr(vLR), j * 32))
    a("ds_read_b128 %s, %s offset:192" % (vr(vNM, 4), vr(vZERO)))
    a("ds_read_b128 %s, %s offset:208" % (vr(vRL, 4), vr(vZERO)))
    Mreg = lambda j, h: vW + 4 * j + h
    a("s_mov_b32 s%d, s%d" % (SRDO, sOUT))
    a("s_and_b32 s%d, s%d, 0xffff" % (SRDO + 1, sOUT + 1))
    a("s_mov_b32 s%d, 0x10000" % (SRDO + 2))
    a("s_mov_b32 s%d, 0x20000" % (SRDO + 3))
    a("s_mov_b32 s%d, 0" % sSPIN)
    a("s_add_u32 s%d, s%d, 1" % (sT0, sCNT))
    a("s_lshr_b32 s%d, s%d, 1" % (sT0, sT0))
    a("s_min_u32 s%d, s%d, %d" % (sT0, sT0, NP))
    a("s_lshl_b32 s%d, 1, s%d" % (sT0, sT0))
    a("s_sub_u32 s%d, s%d, 1" % (sPEND, sT0))
    a("s_mov_b32 s%d, s%d" % (sB0, sPEND))
    for _ in range(OPT.get("odelay", 0)):
        a("s_sleep 8")
    a.lab("L_pollo")
    for j in range(NP):
        a("s_bitcmp1_b32 s%d, %d" % (sPEND, j))
        a("s_cbranch_scc0 L_noload%d" % j)
        a("buffer_load_dwordx4 %s, %s, %s, 0 offen sc1" % (vr(vD + 4 * j, 4), vr(vAD + j), sq(SRDW)))
        a.lab("L_noload%d" % j)
    a("s_waitcnt vmcnt(0)")
    for j in range(NP):
        a("v_cmp_eq_u32 vcc, s%d, %s" % (sNONCE, vr(vD + 4 * j + 3)))
        a("s_cmp_eq_u64 vcc, -1")
        a("s_cselect_b32 s%d, 0x%x, -1" % (sT0, 0xffffffff & ~(1 << j)))
        a("s_and_b32 s%d, s%d, s%d" % (sPEND, sPEND, sT0))
    a("s_cmp_eq_u32 s%d, 0" % sPEND)
    a("s_cbranch_scc1 L_ook")
    a("s_add_u32 s%d, s%d, 1" % (sSPIN, sSPIN))
    a("s_cmp_gt_u32 s%d, 0x40000" % sSPIN)
    a("s_cbranch_scc1 L_end")
    a("s_branch L_pollo")
    a.lab("L_ook")
    if OPT["stamps"]:
        a("v_writelane_b32 %s, s%d, 14" % (vr(vST), sSPIN))
    stamp()
    a("s_waitcnt lgkmcnt(0)")
    for h in range(4):
        a("v_mul_f32 %s, %s, %s" % (vr(vOA + h), vr(vOA + h), vr(vNM + h)))
    for j in range(NP):
        d = vD + 4 * j
        if j >= 1:
            a("s_bitcmp1_b32 s%d, %d" % (sB0, j))
            a("s_cbranch_scc0 L_accdone")
        a("v_perm_b32 %s, %s, %s, s%d" % (vr(d + 3), vr(d), vr(d + 1), sS1))
        a("v_fma_f32 %s, %s, %s, %s" % (vr(vOA), vr(Mreg(j, 0)), vr(d), vr(vOA)))
        a("v_perm_b32 %s, %s, %s, s%d" % (vr(d + 3), vr(d + 3), vr(d + 2), sS2))
        a("v_fma_f32 %s, %s, %s, %s" % (vr(vOA + 1), vr(Mreg(j, 1)), vr(d + 1), vr(vOA + 1)))
        a("v_fma_f32 %s, %s, %s, %s" % (vr(vOA + 2), vr(Mreg(j, 2)), vr(d + 2), vr(vOA + 2)))
        a("v_fma_f32 %s, %s, %s, %s" % (vr(vOA + 3), vr(Mreg(j, 3)), vr(d + 3), vr(vOA + 3)))
    a.lab("L_accdone")
    a("s_add_u32 s%d, s%d, %d" % (sKK, sKK, NSLOT))
    a("s_cmp_lt_u32 s%d, s%d" % (sKK, sN))
    a("s_cbranch_scc0 L_final")
    recs()
    a("s_branch L_cbatch")
    a.lab("L_final")
    for h in range(4):
        a("v_mov_b32 %s, %s" % (vr(vY + h), vr(vOA + h)))
    a("s_nop 1")
    for h in range(4):
        a("v_permlane32_swap_b32 %s, %s" % (vr(vOA + h), vr(vY + h)))
    a("s_nop 1")
    for h in range(4):
        a("v_add_f32 %s, %s, %s" % (vr(vOA + h), vr(vOA + h), vr(vY + h)))
    for h in range(4):
        a("v_mul_f32 %s, %s, %s" % (vr(vOA + h), vr(vOA + h), vr(vRL + h)))
    a("v_cndmask_b32 %s, %s, %s, %s" % (vr(vY), vr(vOA), vr(vOA + 2), sp(sHALF)))
    a("v_cndmask_b32 %s, %s, %s, %s" % (vr(vY + 1), vr(vOA + 1), vr(vOA + 3), sp(sHALF)))
    a("v_cvt_pk_bf16_f32 %s, %s, %s" % (vr(vY), vr(vY), vr(vY + 1)))
    a("buffer_store_short %s, %s, %s, s%d offen sc1" % (vr(vY), vr(vA1), sq(SRDO), sOUTB))
    a("buffer_store_short_d16_hi %s, %s, %s, s%d offen offset:256 sc1" % (vr(vY), vr(vA1), sq(SRDO), sOUTB))
    if OPT["stamps"]:
        a("s_waitcnt vmcnt(0)")
        stamp(True)
        stampout(5)
    a.lab("L_end")
    a("s_endpgm")
    a.l = entry_lines + a.l + ldgen_lines + compute_lines


def build():
    a = A()
    kernel(a)
    s = HEADER
    s += "; @launch grid=(256,1,1) block=(320,1,1) lds=163840\n"
    s += DOC
    s += '.amdgcn_target "amdgcn-amd-amdhsa--gfx950"\n.text\n'
    k = NAME + "_kernel"
    s += ".globl %s\n.p2align 8\n.type %s,@function\n" % (k, k) + a.text()
    s += """.section .rodata,"a"
.p2align 6
.amdhsa_kernel %s
  .amdhsa_next_free_vgpr 256
  .amdhsa_next_free_sgpr 102
  .amdhsa_accum_offset 256
  .amdhsa_group_segment_fixed_size 0
  .amdhsa_kernarg_size 64
  .amdhsa_user_sgpr_count 2
  .amdhsa_user_sgpr_kernarg_segment_ptr 1
  .amdhsa_system_sgpr_workgroup_id_x 1
.end_amdhsa_kernel
""" % k
    return s


if __name__ == "__main__":
    args = sys.argv[1:]
    for x in list(args):
        if x.startswith("--"):
            k = x[2:]
            if k.startswith("odelay="):
                OPT["odelay"] = int(k[7:])
            elif k == "light":
                OPT["light"] = True
                OPT["stamps"] = True
            elif k.startswith("perm="):
                OPT["perm"] = [int(c) for c in k[5:]]
            elif k.startswith("no"):
                OPT[k[2:]] = False
            else:
                OPT[k] = True
            args.remove(x)
    open(args[0] if args else "cdna_kernels/%s.s" % NAME, "w").write(build())
```
